```python
import torch

def _softmax(x, axis=-1):
    return torch.softmax(x, dim=axis)
def _gelu(x):
    return torch.nn.functional.gelu(x, approximate="tanh")
def _silu(x):
    return torch.nn.functional.silu(x)
def _sigmoid(x):
    return torch.sigmoid(x)
def _layernorm(x, axis=-1, eps=1e-5):
    m = x.mean(dim=axis, keepdim=True)
    v = x.var(dim=axis, keepdim=True, unbiased=False)
    return (x - m) / torch.sqrt(v + eps)
def _scatter_add(tgt, idx, src, axis=0):
    return tgt.clone().index_add_(axis, idx, src)
def _segment_sum(src, seg, n):
    out = torch.zeros((n,) + src.shape[1:], dtype=src.dtype)
    return out.index_add_(0, seg, src)
def _pad(x, pw):
    flat = tuple(v for pair in reversed(pw) for v in pair)
    return torch.nn.functional.pad(x, flat)

kernel_name = 'standalone__deep_cross_pnn__recsys'

def setup_inputs():

    _w = (lambda a: (lambda t: t.to(torch.bfloat16) if t.is_floating_point() else t)(torch.as_tensor(a)))
    B, F, D, V = 4096, 100, 64, min(1000, 100000)
    H = 4 * D
    return {
        "idx": _w((lambda lo, hi, *s: torch.randint(lo, hi, s))(0, V, B, F).to(torch.int64)),
        "table": _w((lambda *s: torch.randn(*s, dtype=torch.bfloat16) * 1.6)(V, D) * (D ** -0.5)),
        "w_p": _w((lambda *s: torch.randn(*s, dtype=torch.bfloat16) * 0.05)(F * F) * ((F * F) ** -0.5)),
        "w1": _w((lambda *s: torch.randn(*s, dtype=torch.bfloat16) * 1.6)(F * D, H) * ((F * D) ** -0.5)),
        "b1": _w((lambda *s: torch.randn(*s, dtype=torch.bfloat16) * 1.6)(H) * 0.01),
        "w2": _w((lambda *s: torch.randn(*s, dtype=torch.bfloat16) * 0.05)(H) * (H ** -0.5)),
        "b2": _w((lambda *s: torch.randn(*s, dtype=torch.bfloat16) * 0.05)(1) * 0.01),
    }

def reference(idx, table, w_p, w1, b1, w2, b2):
    emb = table[idx]
    B = emb.shape[0]; F = emb.shape[1]; D = emb.shape[2]
    ip = torch.einsum('bid,bjd->bij', emb, emb)
    ip = ip.reshape(B, F * F)
    logit_p = ip @ w_p
    z = emb.reshape(B, F * D)
    h = _gelu(z @ w1 + b1)
    logit_d = h @ w2 + b2
    return logit_p + logit_d
```

```python
import sys
L=[]
def e(s): L.append("    "+s)
def lab(s): L.append(s+":")
class Trk:
    def __init__(s,name): s.n=0; s.name=name
    def issue(s): s.n+=1; return s.n
    def wait(s,tok):
        k=s.n-tok
        e(f"s_waitcnt {s.name}({k})")
VM=Trk("vmcnt"); LG=Trk("lgkmcnt")
R0=128000
vL=1; vT0=2; vT1=3; vT2=4; vT3=5
vTabOff=6; vWpOff=7; vW1=8; vW2=9; vBoff=10; vB=11; vH16=12; vS16=13
vIoff=14
vPoff=18
vDacc=20
vD=24
vPk=40
vEb=42
vE=60
vWf=92
vWt=100
vIdx=198
vPidx=230
vB1=60; vW2e=68
aAcc=0; aP=64

e("s_cmp_ge_u32 s2, 256")
e("s_cbranch_scc1 L_end")
e("s_load_dwordx16 s[4:19], s[0:1], 0")
e("s_load_dwordx4 s[20:23], s[0:1], 64")
e("v_and_b32 v1, 63, v0")
e("v_lshrrev_b32 v2, 6, v0")
e("s_nop 0")
e("v_readfirstlane_b32 s24, v2")
e("s_lshr_b32 s25, s2, 3")
e("s_and_b32 s26, s2, 7")
e("s_lshl_b32 s27, s25, 7")
e("v_and_b32 v2, 7, v1")
e("v_lshrrev_b32 v3, 4, v1")
e("s_and_b32 s28, s24, 1")
e("s_lshl_b32 s28, s28, 2")
e("v_add_u32 v4, s28, v3")
e("v_and_b32 v4, 7, v4")
e("v_xor_b32 v2, v2, v4")
e("v_lshlrev_b32 v2, 4, v2")
e("v_lshrrev_b32 v4, 3, v1")
e(f"v_lshl_or_b32 v{vTabOff}, v4, 7, v2")
e(f"v_lshlrev_b32 v{vWpOff}, 4, v1")
e("v_and_b32 v2, 15, v1")
e("v_lshrrev_b32 v4, 2, v2")
e("v_lshl_add_u32 v4, v3, 2, v4")
e("s_movk_i32 s29, 200")
e("v_mul_lo_u32 v4, v4, s29")
e("v_and_b32 v5, 3, v1")
e("v_lshl_add_u32 v4, v5, 3, v4")
e(f"v_add_u32 v{vW1}, {R0}, v4")
e("v_mul_lo_u32 v4, v2, s29")
e("v_lshl_add_u32 v4, v3, 3, v4")
e(f"v_add_u32 v{vW2}, {R0}, v4")
e("v_lshrrev_b32 v4, 2, v1")
e("v_lshlrev_b32 v4, 9, v4")
e(f"v_lshl_add_u32 v{vBoff}, v5, 4, v4")
e("v_lshrrev_b32 v4, 5, v1")
e(f"v_lshlrev_b32 v{vH16}, 4, v4")
e(f"v_lshlrev_b32 v{vS16}, 4, v3")
e("v_lshrrev_b32 v4, 2, v2")
e(f"v_lshrrev_b32 v2, 1, v{vH16}")
e("v_add_u32 v4, v4, v2")
e("v_lshlrev_b32 v4, 6, v4")
e("v_and_b32 v2, 1, v3")
e("v_lshl_add_u32 v4, v2, 5, v4")
e("v_lshl_add_u32 v4, v5, 3, v4")
e("s_lshl_b32 s30, s24, 13")
e(f"s_add_u32 s30, s30, {R0}")
e(f"v_add_u32 v{vB}, s30, v4")
e("v_and_b32 v2, 31, v1")
e("v_add_u32 v2, s27, v2")
e("s_movk_i32 s29, 400")
e("v_mul_lo_u32 v2, v2, s29")
e("s_mul_i32 s31, s24, 100")
e("v_add_u32 v2, s31, v2")
for t in range(4):
    e(f"v_add_u32 v{vIoff+t}, {t*32*400}, v2")
e("s_lshl_b32 s31, s26, 4")
e("s_add_u32 s31, s31, s27")
e("s_lshl_b32 s32, s24, 2")
e("s_add_u32 s31, s31, s32")
e("s_mul_i32 s32, s31, 400")
e("v_and_b32 v2, 15, v1")
e(f"v_lshl_add_u32 v{vPoff}, v2, 2, s32")
e("s_waitcnt lgkmcnt(0)")
e("s_mov_b32 s36, s8"); e("s_mov_b32 s37, s9"); e("s_mov_b32 s38, 20000"); e("s_mov_b32 s39, 0x00020000")
e("s_lshl_b32 s33, s24, 10")
e("s_add_u32 s40, s6, s33"); e("s_addc_u32 s41, s7, 0")
e("s_mov_b32 s34, s33")
for j in range(32):
    if j==31:
        e("s_cmp_lg_u32 s24, 0"); e("s_cbranch_scc1 L_tabdone")
    e("s_mov_b32 m0, s34")
    e("s_nop 0")
    e(f"global_load_lds_dwordx4 v{vTabOff}, s[40:41]")
    e("s_add_u32 s40, s40, 4096"); e("s_addc_u32 s41, s41, 0")
    e("s_add_u32 s34, s34, 4096")
lab("L_tabdone")
e(f"s_add_u32 s34, s33, {R0}")
for j in range(5):
    e("s_mov_b32 m0, s34")
    e("s_nop 0")
    e(f"buffer_load_dwordx4 v{vWpOff}, s[36:39], s33 offen lds")
    e("s_add_u32 s33, s33, 4096"); e("s_add_u32 s34, s34, 4096")
e("s_waitcnt vmcnt(0)")
e("s_barrier")
tiles=[(ti,tj) for ti in range(7) for tj in range(ti,7)]
wreg={}; r=vWt
for (ti,tj) in tiles:
    wreg[(ti,tj,1)]=r; r+=2
    e(f"ds_read_b64_tr_b16 v[{r-2}:{r-1}], v{vW1} offset:{ti*3200+tj*32}")
    if ti!=tj:
        wreg[(ti,tj,2)]=r; r+=2
        e(f"ds_read_b64 v[{r-2}:{r-1}], v{vW2} offset:{tj*3200+ti*32}")
    if (len(wreg)%12)==0: e("s_waitcnt lgkmcnt(0)")
assert r==vWt+98
e("v_and_b32 v2, 15, v1")
e("v_cmp_gt_u32 s[42:43], 4, v2")
e("v_cmp_gt_u32 s[44:45], 16, v1")
e("s_and_b64 s[44:45], s[44:45], s[42:43]")
e("s_waitcnt lgkmcnt(0)")
e("s_barrier")
for (ti,tj) in tiles:
    if tj==6:
        m="s[44:45]" if ti==6 else "s[42:43]"
        for k in (1,2):
            if (ti,tj,k) in wreg:
                for d in range(2):
                    rr=wreg[(ti,tj,k)]+d
                    e(f"v_cndmask_b32 v{rr}, 0, v{rr}, {m}")
e("s_mul_i32 s33, s24, 819200")
e("s_lshl_b32 s34, s26, 6")
e("s_add_u32 s33, s33, s34")
e("s_add_u32 s40, s10, s33"); e("s_addc_u32 s41, s11, 0")
dmaTok={}
def dmaB(u):
    e(f"s_add_u32 m0, s30, {(u&7)*1024}")
    e("s_nop 0")
    e(f"global_load_lds_dwordx4 v{vBoff}, s[40:41]")
    dmaTok[u]=VM.issue()
    e("s_add_u32 s40, s40, 8192"); e("s_addc_u32 s41, s41, 0")
idxTok={}
def idxload(G):
    buf=vIdx+(G&1)*16
    for t in range(4):
        if G<6: e(f"global_load_dwordx4 v[{buf+4*t}:{buf+4*t+3}], v{vIoff+t}, s[4:5] offset:{G*16}")
        else:   e(f"global_load_dword v{buf+4*t}, v{vIoff+t}, s[4:5] offset:{G*16}")
        idxTok[G]=VM.issue()
pTok={}
def pidx(q):
    buf=vPidx+(q&1)*7
    for t in range(7):
        if t<6: e(f"global_load_dword v{buf+t}, v{vPoff}, s[4:5] offset:{q*400+t*64}")
        else:
            e(f"global_load_dword v{buf+t}, v{vT3}, s[4:5] offset:{q*400+t*64}")
        pTok[q]=VM.issue()
e("v_and_b32 v2, 15, v1"); e("v_min_u32 v2, 3, v2"); e(f"v_lshl_add_u32 v{vT3}, v2, 2, s32")
pidx(0); pidx(1)
for u in range(7): dmaB(u)
idxload(0)
def addr_base(dst,src,xr):
    e(f"v_bfe_u32 v{vT0}, v{src}, 1, 3")
    e(f"v_lshlrev_b32 v{vT1}, 7, v{src}")
    e(f"v_lshl_or_b32 v{vT0}, v{vT0}, 4, v{vT1}")
    e(f"v_xor_b32 v{dst}, v{vT0}, v{xr}")
def pnn_reads(q):
    VM.wait(pTok[q])
    buf=vPidx+(q&1)*7; a=aP+(q&1)*56
    for t in range(7):
        addr_base(vEb,buf+t,vS16)
        e(f"v_xor_b32 v{vEb+1}, 64, v{vEb}")
        e(f"ds_read_b128 a[{a+8*t}:{a+8*t+3}], v{vEb}")
        e(f"ds_read_b128 a[{a+8*t+4}:{a+8*t+7}], v{vEb+1}")
    if q+2<4: pidx(q+2)
def pnn_valu(k,ti,tj):
    d=vD+(k&3)*4
    e(f"v_cvt_pk_bf16_f32 v{vPk}, v{d}, v{d+1}")
    e(f"v_cvt_pk_bf16_f32 v{vPk+1}, v{d+2}, v{d+3}")
    w=wreg[(ti,tj,1)]
    e(f"v_dot2_f32_bf16 v{vDacc}, v{vPk}, v{w}, v{vDacc}")
    e(f"v_dot2_f32_bf16 v{vDacc+1}, v{vPk+1}, v{w+1}, v{vDacc+1}")
    if ti!=tj:
        w=wreg[(ti,tj,2)]
        e(f"v_dot2_f32_bf16 v{vDacc+2}, v{vPk}, v{w}, v{vDacc+2}")
        e(f"v_dot2_f32_bf16 v{vDacc+3}, v{vPk+1}, v{w+1}, v{vDacc+3}")
pnn_reads(0)
for q in range(4):
    e("s_waitcnt lgkmcnt(0)")
    if q<3: pnn_reads(q+1)
    a=aP+(q&1)*56
    for i in range(4): e(f"v_mov_b32 v{vDacc+i}, 0")
    for k,(ti,tj) in enumerate(tiles):
        d=vD+(k&3)*4
        e(f"v_mfma_f32_16x16x32_bf16 v[{d}:{d+3}], a[{a+8*ti}:{a+8*ti+3}], a[{a+8*tj}:{a+8*tj+3}], 0")
        e(f"v_mfma_f32_16x16x32_bf16 v[{d}:{d+3}], a[{a+8*ti+4}:{a+8*ti+7}], a[{a+8*tj+4}:{a+8*tj+7}], v[{d}:{d+3}]")
        if k>=2:
            if k==2: e("s_nop 4")
            pnn_valu(k-2,*tiles[k-2])
    e("s_nop 7"); e("s_nop 3")
    pnn_valu(26,*tiles[26]); pnn_valu(27,*tiles[27])
    e("s_nop 3")
    e(f"v_add_f32 v{vDacc}, v{vDacc}, v{vDacc+1}")
    e(f"v_add_f32 v{vDacc+2}, v{vDacc+2}, v{vDacc+3}")
    e(f"v_add_f32 v{vT0}, v{vDacc}, v{vDacc+2}")
    for sh in (1,2,4,8):
        e("s_nop 1")
        e(f"v_add_f32_dpp v{vT0}, v{vT0}, v{vT0} row_shr:{sh} row_mask:0xf bank_mask:0xf bound_ctrl:0")
    e("s_nop 1")
    for i,ln in enumerate((15,31,47,63)): e(f"v_readlane_b32 s{46+i}, v{vT0}, {ln}")
    e("s_nop 3")
    e(f"v_mov_b32 v{vT0}, s46")
    for i in (47,48,49): e(f"v_add_f32 v{vT0}, s{i}, v{vT0}")
    e("s_lshl_b32 s50, s31, 2")
    e("s_add_u32 s50, s50, 131072")
    e(f"v_mov_b32 v{vT1}, s50")
    e("s_mov_b64 exec, 1")
    e(f"global_store_dword v{vT1}, v{vT0}, s[22:23] offset:{q*4} sc1"); VM.issue()
    e("s_mov_b64 exec, -1")
lgTok={}
def mlp_reads(u):
    f,s=u>>2,u&3
    if s==0:
        G=f>>2
        if (f&3)==0:
            VM.wait(idxTok[G])
            if G+1<7: idxload(G+1)
        buf=vIdx+(G&1)*16
        for t in range(4):
            addr_base(vEb+4*t,buf+4*t+(f&3),vH16)
            for ss in (1,2,3): e(f"v_xor_b32 v{vEb+4*t+ss}, {32*ss}, v{vEb+4*t}")
    VM.wait(dmaTok[u])
    eb=vE+(u&1)*16; wb=vWf+(u&1)*4
    e(f"ds_read_b64_tr_b16 v[{wb}:{wb+1}], v{vB} offset:{(u&7)*1024}"); LG.issue()
    e(f"ds_read_b64_tr_b16 v[{wb+2}:{wb+3}], v{vB} offset:{(u&7)*1024+256}"); LG.issue()
    for t in range(4):
        e(f"ds_read_b128 v[{eb+4*t}:{eb+4*t+3}], v{vEb+4*t+s}"); lgTok[u]=LG.issue()
LG.n=0
mlp_reads(0)
for u in range(100):
    if u+1<100: mlp_reads(u+1)
    LG.wait(lgTok[u])
    eb=vE+(u&1)*16; wb=vWf+(u&1)*4
    for t in range(4):
        c="0" if u==0 else f"a[{16*t}:{16*t+15}]"
        e(f"v_mfma_f32_32x32x16_bf16 a[{16*t}:{16*t+15}], v[{wb}:{wb+3}], v[{eb+4*t}:{eb+4*t+3}], {c}")
    if u+7<100: dmaB(u+7)
e("s_lshl_b32 s33, s26, 6")
e(f"v_lshrrev_b32 v{vT0}, 1, v{vH16}")
e(f"v_add_u32 v{vT0}, s33, v{vT0}")
for q in range(4):
    e(f"global_load_dwordx2 v[{vIdx+2*q}:{vIdx+2*q+1}], v{vT0}, s[12:13] offset:{16*q}")
    e(f"global_load_dwordx2 v[{vIdx+8+2*q}:{vIdx+8+2*q+1}], v{vT0}, s[14:15] offset:{16*q}")
e("s_nop 7"); e("s_nop 7")
e("s_barrier")
e("s_lshl_b32 s33, s24, 14")
e(f"v_lshl_add_u32 v{vT0}, v1, 4, s33")
for t in range(4):
    for q in range(4):
        e(f"ds_write_b128 v{vT0}, a[{16*t+4*q}:{16*t+4*q+3}] offset:{t*4096+q*1024}")
e("s_waitcnt lgkmcnt(0)")
e("s_barrier")
e("s_lshl_b32 s33, s24, 12")
e(f"v_lshl_add_u32 v{vT0}, v1, 4, s33")
for wv in range(4):
    for q in range(4):
        e(f"ds_read_b128 v[{100+16*wv+4*q}:{100+16*wv+4*q+3}], v{vT0} offset:{wv*16384+q*1024}")
e("s_waitcnt lgkmcnt(0) vmcnt(0)")
e("s_mov_b32 s33, 0xffff0000")
e("s_mov_b32 s34, 0x3d372713")
e("s_mov_b32 s35, 0xc0135761")
e(f"v_mov_b32 v{vDacc}, 0")
for r_ in range(16):
    x=100+r_
    e(f"v_add_f32 v{x}, v{x}, v{116+r_}")
    e(f"v_add_f32 v{132+r_}, v{132+r_}, v{148+r_}")
    e(f"v_add_f32 v{x}, v{x}, v{132+r_}")
    breg=vIdx+(r_>>1); wr=vIdx+8+(r_>>1)
    e(f"v_cvt_pk_bf16_f32 v{x}, v{x}, v{x}")
    e(f"v_lshlrev_b32 v{x}, 16, v{x}")
    if r_&1: e(f"v_and_b32 v{vT1}, s33, v{breg}"); e(f"v_and_b32 v{vT2}, s33, v{wr}")
    else:    e(f"v_lshlrev_b32 v{vT1}, 16, v{breg}"); e(f"v_lshlrev_b32 v{vT2}, 16, v{wr}")
    e(f"v_add_f32 v{x}, v{x}, v{vT1}")
    e(f"v_cvt_pk_bf16_f32 v{x}, v{x}, v{x}")
    e(f"v_lshlrev_b32 v{x}, 16, v{x}")
    e(f"v_mul_f32 v{vT1}, v{x}, v{x}")
    e(f"v_fma_f32 v{vT1}, v{vT1}, s34, 1.0")
    e(f"v_mul_f32 v{vT1}, v{vT1}, v{x}")
    e(f"v_mul_f32 v{vT1}, s35, v{vT1}")
    e(f"v_exp_f32 v{vT1}, v{vT1}")
    e("s_nop 0")
    e(f"v_add_f32 v{vT1}, 1.0, v{vT1}")
    e(f"v_rcp_f32 v{vT1}, v{vT1}")
    e("s_nop 0")
    e(f"v_mul_f32 v{x}, v{x}, v{vT1}")
    e(f"v_cvt_pk_bf16_f32 v{x}, v{x}, v{x}")
    e(f"v_lshlrev_b32 v{x}, 16, v{x}")
    e(f"v_fmac_f32 v{vDacc}, v{x}, v{vT2}")
e(f"v_mov_b32 v{vDacc+1}, v{vDacc}")
e("s_nop 1")
e(f"v_permlane32_swap_b32 v{vDacc}, v{vDacc+1}")
e("s_nop 1")
e(f"v_add_f32 v{vDacc}, v{vDacc}, v{vDacc+1}")
e("s_lshl_b32 s33, s2, 9")
e("s_lshl_b32 s34, s24, 7")
e("s_add_u32 s33, s33, s34")
e(f"v_lshl_add_u32 v{vT0}, v1, 2, s33")
e("s_mov_b64 exec, 0xffffffff")
e(f"global_store_dword v{vT0}, v{vDacc}, s[22:23] sc1")
e("s_mov_b64 exec, -1")
e("s_waitcnt vmcnt(0)")
e("s_barrier")
e("s_cmp_lg_u32 s24, 0")
e("s_cbranch_scc1 L_end")
e("s_lshl_b32 s33, s25, 2")
e(f"v_mov_b32 v{vT0}, s33")
e(f"v_mov_b32 v{vT1}, 1")
e("s_mov_b64 exec, 1")
e(f"global_atomic_add v{vT2}, v{vT0}, v{vT1}, s[20:21] sc0 sc1")
e("s_waitcnt vmcnt(0)")
e(f"v_readfirstlane_b32 s33, v{vT2}")
e("s_mov_b64 exec, -1")
e("s_cmp_lg_u32 s33, 7")
e("s_cbranch_scc1 L_end")
e("s_lshl_b32 s33, s25, 12")
e(f"v_lshl_add_u32 v{vT0}, v1, 3, s33")
for j in range(8):
    e(f"global_load_dwordx2 v[{100+2*j}:{101+2*j}], v{vT0}, s[22:23] offset:{512*j} sc1")
e("s_lshl_b32 s33, s25, 9")
e("s_add_u32 s33, s33, 131072")
e(f"v_lshl_add_u32 v{vT1}, v1, 3, s33")
e(f"global_load_dwordx2 v[116:117], v{vT1}, s[22:23] sc1")
e(f"v_mov_b32 v{vT2}, 0")
e(f"global_load_ushort v118, v{vT2}, s[16:17]")
e("s_waitcnt vmcnt(0)")
e("v_lshlrev_b32 v118, 16, v118")
for d in range(2):
    for j in range(1,8): e(f"v_add_f32 v{100+d}, v{100+d}, v{100+2*j+d}")
    for rr in (100+d,116+d):
        e(f"v_cvt_pk_bf16_f32 v{rr}, v{rr}, v{rr}"); e(f"v_lshlrev_b32 v{rr}, 16, v{rr}")
    e(f"v_add_f32 v{100+d}, v{100+d}, v118")
    e(f"v_cvt_pk_bf16_f32 v{100+d}, v{100+d}, v{100+d}"); e(f"v_lshlrev_b32 v{100+d}, 16, v{100+d}")
    e(f"v_add_f32 v{100+d}, v{100+d}, v{116+d}")
e("v_cvt_pk_bf16_f32 v100, v100, v101")
e("s_lshl_b32 s33, s25, 8")
e(f"v_lshl_add_u32 v{vT0}, v1, 2, s33")
e(f"global_store_dword v{vT0}, v100, s[18:19]")
e("s_waitcnt vmcnt(0)")
lab("L_end")

src=open('standalone__deep_cross_pnn__recsys.s.ref').read().split('\n')
out=[]
for ln in src:
    if ln.startswith('; @launch'): out.append('; @launch grid=(256,1,1) block=(256,1,1) lds=163840'); continue
    out.append(ln)
    if ln.startswith('standalone__deep_cross_pnn__recsys_kernel:'): break
out+=L
out.append('s_endpgm')
i=src.index('s_endpgm')
for ln in src[i+1:]:
    ln=ln.replace('next_free_vgpr 256','next_free_vgpr 512')
    out.append(ln)
open('standalone__deep_cross_pnn__recsys.s','w').write('\n'.join(out))
```

```python
import sys
L=[]
def e(s): L.append("    "+s)
def lab(s): L.append(s+":")
class Trk:
    def __init__(s,name): s.n=0; s.name=name
    def issue(s): s.n+=1; return s.n
    def wait(s,tok):
        k=s.n-tok
        e(f"s_waitcnt {s.name}({k})")
VM=Trk("vmcnt"); LG=Trk("lgkmcnt")
R0=128000
vL=1; vT0=2; vT1=3; vT2=4; vT3=5
vTabOff=6; vWpOff=7; vW1=8; vW2=9; vBoff=10; vB=11; vH16=12; vS16=13
vIoff=14
vPoff=18
vDacc=20
vD=24
vPk=40
vEb=42
vE=60
vWf=92
vWt=100
vIdx=198
vPidx=230
vB1=60; vW2e=68
aAcc=0; aP=64

e("s_cmp_ge_u32 s2, 256")
e("s_cbranch_scc1 L_end")
e("s_load_dwordx16 s[4:19], s[0:1], 0")
e("s_load_dwordx4 s[20:23], s[0:1], 64")
e("v_and_b32 v1, 63, v0")
e("v_lshrrev_b32 v2, 6, v0")
e("s_nop 0")
e("v_readfirstlane_b32 s24, v2")
e("s_lshr_b32 s25, s2, 3")
e("s_and_b32 s26, s2, 7")
e("s_lshl_b32 s27, s25, 7")
e("v_and_b32 v2, 7, v1")
e("v_lshrrev_b32 v3, 4, v1")
e("s_and_b32 s28, s24, 1")
e("s_lshl_b32 s28, s28, 2")
e("v_add_u32 v4, s28, v3")
e("v_and_b32 v4, 7, v4")
e("v_xor_b32 v2, v2, v4")
e("v_lshlrev_b32 v2, 4, v2")
e("v_lshrrev_b32 v4, 3, v1")
e(f"v_lshl_or_b32 v{vTabOff}, v4, 7, v2")
e(f"v_lshlrev_b32 v{vWpOff}, 4, v1")
e("v_and_b32 v2, 15, v1")
e("v_lshrrev_b32 v4, 2, v2")
e("v_lshl_add_u32 v4, v3, 2, v4")
e("s_movk_i32 s29, 200")
e("v_mul_lo_u32 v4, v4, s29")
e("v_and_b32 v5, 3, v1")
e("v_lshl_add_u32 v4, v5, 3, v4")
e(f"v_add_u32 v{vW1}, {R0}, v4")
e("v_mul_lo_u32 v4, v2, s29")
e("v_lshl_add_u32 v4, v3, 3, v4")
e(f"v_add_u32 v{vW2}, {R0}, v4")
e("v_lshrrev_b32 v4, 2, v1")
e("v_lshlrev_b32 v4, 9, v4")
e(f"v_lshl_add_u32 v{vBoff}, v5, 4, v4")
e("v_lshrrev_b32 v4, 5, v1")
e(f"v_lshlrev_b32 v{vH16}, 4, v4")
e(f"v_lshlrev_b32 v{vS16}, 4, v3")
e("v_lshrrev_b32 v4, 2, v2")
e(f"v_lshrrev_b32 v2, 1, v{vH16}")
e("v_add_u32 v4, v4, v2")
e("v_lshlrev_b32 v4, 6, v4")
e("v_and_b32 v2, 1, v3")
e("v_lshl_add_u32 v4, v2, 5, v4")
e("v_lshl_add_u32 v4, v5, 3, v4")
e("s_lshl_b32 s30, s24, 13")
e(f"s_add_u32 s30, s30, {R0}")
e(f"v_add_u32 v{vB}, s30, v4")
e("v_and_b32 v2, 31, v1")
e("v_add_u32 v2, s27, v2")
e("s_movk_i32 s29, 400")
e("v_mul_lo_u32 v2, v2, s29")
e("s_mul_i32 s31, s24, 100")
e("v_add_u32 v2, s31, v2")
for t in range(4):
    e(f"v_add_u32 v{vIoff+t}, {t*32*400}, v2")
e("s_lshl_b32 s31, s26, 4")
e("s_add_u32 s31, s31, s27")
e("s_lshl_b32 s32, s24, 2")
e("s_add_u32 s31, s31, s32")
e("s_mul_i32 s32, s31, 400")
e("v_and_b32 v2, 15, v1")
e(f"v_lshl_add_u32 v{vPoff}, v2, 2, s32")
e("s_waitcnt lgkmcnt(0)")
e("s_mov_b32 s36, s8"); e("s_mov_b32 s37, s9"); e("s_mov_b32 s38, 20000"); e("s_mov_b32 s39, 0x00020000")
e("s_mul_i32 s33, s25, 200"); e("s_mul_i32 s34, s24, 50"); e("s_add_u32 s33, s33, s34")
e("v_min_u32 v2, 49, v1"); e("v_add_u32 v2, s33, v2"); e("v_lshlrev_b32 v2, 9, v2")
e("s_lshl_b32 s34, s26, 6"); e("v_add_u32 v2, s34, v2")
e("global_load_dword v250, v2, s[10:11]")
e("s_lshl_b32 s33, s24, 10")
e("s_add_u32 s40, s6, s33"); e("s_addc_u32 s41, s7, 0")
e("s_mov_b32 s34, s33")
for j in range(32):
    if j==31:
        e("s_cmp_lg_u32 s24, 0"); e("s_cbranch_scc1 L_tabdone")
    e("s_mov_b32 m0, s34")
    e("s_nop 0")
    e(f"global_load_lds_dwordx4 v{vTabOff}, s[40:41]")
    e("s_add_u32 s40, s40, 4096"); e("s_addc_u32 s41, s41, 0")
    e("s_add_u32 s34, s34, 4096")
lab("L_tabdone")
e(f"s_add_u32 s34, s33, {R0}")
for j in range(5):
    e("s_mov_b32 m0, s34")
    e("s_nop 0")
    e(f"buffer_load_dwordx4 v{vWpOff}, s[36:39], s33 offen lds")
    e("s_add_u32 s33, s33, 4096"); e("s_add_u32 s34, s34, 4096")
e("s_waitcnt vmcnt(0)")
e("s_barrier")
tiles=[(ti,tj) for ti in range(7) for tj in range(ti,7)]
wreg={}; r=vWt
for (ti,tj) in tiles:
    wreg[(ti,tj,1)]=r; r+=2
    e(f"ds_read_b64_tr_b16 v[{r-2}:{r-1}], v{vW1} offset:{ti*3200+tj*32}")
    if ti!=tj:
        wreg[(ti,tj,2)]=r; r+=2
        e(f"ds_read_b64 v[{r-2}:{r-1}], v{vW2} offset:{tj*3200+ti*32}")
    if (len(wreg)%12)==0: e("s_waitcnt lgkmcnt(0)")
assert r==vWt+98
e("v_and_b32 v2, 15, v1")
e("v_cmp_gt_u32 s[42:43], 4, v2")
e("v_cmp_gt_u32 s[44:45], 16, v1")
e("s_and_b64 s[44:45], s[44:45], s[42:43]")
e("s_waitcnt lgkmcnt(0)")
e("s_barrier")
for (ti,tj) in tiles:
    if tj==6:
        m="s[44:45]" if ti==6 else "s[42:43]"
        for k in (1,2):
            if (ti,tj,k) in wreg:
                for d in range(2):
                    rr=wreg[(ti,tj,k)]+d
                    e(f"v_cndmask_b32 v{rr}, 0, v{rr}, {m}")
e("s_mul_i32 s33, s24, 819200")
e("s_lshl_b32 s34, s26, 6")
e("s_add_u32 s33, s33, s34")
e("s_add_u32 s40, s10, s33"); e("s_addc_u32 s41, s11, 0")
dmaTok={}
def dmaB(u):
    e(f"s_add_u32 m0, s30, {(u&7)*1024}")
    e("s_nop 0")
    e(f"global_load_lds_dwordx4 v{vBoff}, s[40:41]")
    dmaTok[u]=VM.issue()
    e("s_add_u32 s40, s40, 8192"); e("s_addc_u32 s41, s41, 0")
idxTok={}
def idxload(G):
    buf=vIdx+(G&1)*16
    for t in range(4):
        if G<6: e(f"global_load_dwordx4 v[{buf+4*t}:{buf+4*t+3}], v{vIoff+t}, s[4:5] offset:{G*16}")
        else:   e(f"global_load_dword v{buf+4*t}, v{vIoff+t}, s[4:5] offset:{G*16}")
        idxTok[G]=VM.issue()
pTok={}
def pidx(q):
    buf=vPidx+(q&1)*7
    for t in range(7):
        if t<6: e(f"global_load_dword v{buf+t}, v{vPoff}, s[4:5] offset:{q*400+t*64}")
        else:
            e(f"global_load_dword v{buf+t}, v{vT3}, s[4:5] offset:{q*400+t*64}")
        pTok[q]=VM.issue()
e("v_and_b32 v2, 15, v1"); e("v_min_u32 v2, 3, v2"); e(f"v_lshl_add_u32 v{vT3}, v2, 2, s32")
pidx(0); pidx(1)
for u in range(7): dmaB(u)
idxload(0)
def addr_base(dst,src,xr):
    e(f"v_bfe_u32 v{vT0}, v{src}, 1, 3")
    e(f"v_lshlrev_b32 v{vT1}, 7, v{src}")
    e(f"v_lshl_or_b32 v{vT0}, v{vT0}, 4, v{vT1}")
    e(f"v_xor_b32 v{dst}, v{vT0}, v{xr}")
def pnn_reads(q):
    VM.wait(pTok[q])
    buf=vPidx+(q&1)*7; a=aP+(q&1)*56
    for t in range(7):
        addr_base(vEb,buf+t,vS16)
        e(f"v_xor_b32 v{vEb+1}, 64, v{vEb}")
        e(f"ds_read_b128 a[{a+8*t}:{a+8*t+3}], v{vEb}")
        e(f"ds_read_b128 a[{a+8*t+4}:{a+8*t+7}], v{vEb+1}")
    if q+2<4: pidx(q+2)
def pnn_valu(k,ti,tj):
    d=vD+(k&3)*4
    e(f"v_cvt_pk_bf16_f32 v{vPk}, v{d}, v{d+1}")
    e(f"v_cvt_pk_bf16_f32 v{vPk+1}, v{d+2}, v{d+3}")
    w=wreg[(ti,tj,1)]
    e(f"v_dot2_f32_bf16 v{vDacc}, v{vPk}, v{w}, v{vDacc}")
    e(f"v_dot2_f32_bf16 v{vDacc+1}, v{vPk+1}, v{w+1}, v{vDacc+1}")
    if ti!=tj:
        w=wreg[(ti,tj,2)]
        e(f"v_dot2_f32_bf16 v{vDacc+2}, v{vPk}, v{w}, v{vDacc+2}")
        e(f"v_dot2_f32_bf16 v{vDacc+3}, v{vPk+1}, v{w+1}, v{vDacc+3}")
pnn_reads(0)
for q in range(4):
    e("s_waitcnt lgkmcnt(0)")
    if q<3: pnn_reads(q+1)
    a=aP+(q&1)*56
    for i in range(4): e(f"v_mov_b32 v{vDacc+i}, 0")
    for k,(ti,tj) in enumerate(tiles):
        d=vD+(k&3)*4
        e(f"v_mfma_f32_16x16x32_bf16 v[{d}:{d+3}], a[{a+8*ti}:{a+8*ti+3}], a[{a+8*tj}:{a+8*tj+3}], 0")
        e(f"v_mfma_f32_16x16x32_bf16 v[{d}:{d+3}], a[{a+8*ti+4}:{a+8*ti+7}], a[{a+8*tj+4}:{a+8*tj+7}], v[{d}:{d+3}]")
        if k>=2:
            if k==2: e("s_nop 4")
            pnn_valu(k-2,*tiles[k-2])
    e("s_nop 7"); e("s_nop 3")
    pnn_valu(26,*tiles[26]); pnn_valu(27,*tiles[27])
    e("s_nop 3")
    e(f"v_add_f32 v{vDacc}, v{vDacc}, v{vDacc+1}")
    e(f"v_add_f32 v{vDacc+2}, v{vDacc+2}, v{vDacc+3}")
    e(f"v_add_f32 v{vT0}, v{vDacc}, v{vDacc+2}")
    for sh in (1,2,4,8):
        e("s_nop 1")
        e(f"v_add_f32_dpp v{vT0}, v{vT0}, v{vT0} row_shr:{sh} row_mask:0xf bank_mask:0xf bound_ctrl:0")
    e("s_nop 1")
    for i,ln in enumerate((15,31,47,63)): e(f"v_readlane_b32 s{46+i}, v{vT0}, {ln}")
    e("s_nop 3")
    e(f"v_mov_b32 v{vT0}, s46")
    for i in (47,48,49): e(f"v_add_f32 v{vT0}, s{i}, v{vT0}")
    e("s_lshl_b32 s50, s31, 2")
    e("s_add_u32 s50, s50, 131072")
    e(f"v_mov_b32 v{vT1}, s50")
    e("s_mov_b64 exec, 1")
    e(f"global_store_dword v{vT1}, v{vT0}, s[22:23] offset:{q*4} sc1"); VM.issue()
    e("s_mov_b64 exec, -1")
lgTok={}
def mlp_reads(u):
    f,s=u>>2,u&3
    if s==0:
        G=f>>2
        if (f&3)==0:
            VM.wait(idxTok[G])
            if G+1<7: idxload(G+1)
        buf=vIdx+(G&1)*16
        for t in range(4):
            addr_base(vEb+4*t,buf+4*t+(f&3),vH16)
            for ss in (1,2,3): e(f"v_xor_b32 v{vEb+4*t+ss}, {32*ss}, v{vEb+4*t}")
    VM.wait(dmaTok[u])
    eb=vE+(u&1)*16; wb=vWf+(u&1)*4
    e(f"ds_read_b64_tr_b16 v[{wb}:{wb+1}], v{vB} offset:{(u&7)*1024}"); LG.issue()
    e(f"ds_read_b64_tr_b16 v[{wb+2}:{wb+3}], v{vB} offset:{(u&7)*1024+256}"); LG.issue()
    for t in range(4):
        e(f"ds_read_b128 v[{eb+4*t}:{eb+4*t+3}], v{vEb+4*t+s}"); lgTok[u]=LG.issue()
LG.n=0
mlp_reads(0)
for u in range(100):
    if u+1<100: mlp_reads(u+1)
    LG.wait(lgTok[u])
    eb=vE+(u&1)*16; wb=vWf+(u&1)*4
    for t in range(4):
        c="0" if u==0 else f"a[{16*t}:{16*t+15}]"
        e(f"v_mfma_f32_32x32x16_bf16 a[{16*t}:{16*t+15}], v[{wb}:{wb+3}], v[{eb+4*t}:{eb+4*t+3}], {c}")
    if u+7<100: dmaB(u+7)
e("s_lshl_b32 s33, s26, 6")
e(f"v_lshrrev_b32 v{vT0}, 1, v{vH16}")
e(f"v_add_u32 v{vT0}, s33, v{vT0}")
for q in range(4):
    e(f"global_load_dwordx2 v[{vIdx+2*q}:{vIdx+2*q+1}], v{vT0}, s[12:13] offset:{16*q}")
    e(f"global_load_dwordx2 v[{vIdx+8+2*q}:{vIdx+8+2*q+1}], v{vT0}, s[14:15] offset:{16*q}")
e("s_nop 7"); e("s_nop 7")
e("s_barrier")
e("s_lshl_b32 s33, s24, 14")
e(f"v_lshl_add_u32 v{vT0}, v1, 4, s33")
for t in range(4):
    for q in range(4):
        e(f"ds_write_b128 v{vT0}, a[{16*t+4*q}:{16*t+4*q+3}] offset:{t*4096+q*1024}")
e("s_waitcnt lgkmcnt(0)")
e("s_barrier")
e("s_lshl_b32 s33, s24, 12")
e(f"v_lshl_add_u32 v{vT0}, v1, 4, s33")
for wv in range(4):
    for q in range(4):
        e(f"ds_read_b128 v[{100+16*wv+4*q}:{100+16*wv+4*q+3}], v{vT0} offset:{wv*16384+q*1024}")
e("s_waitcnt lgkmcnt(0) vmcnt(0)")
e("s_mov_b32 s33, 0xffff0000")
e("s_mov_b32 s34, 0x3d372713")
e("s_mov_b32 s35, 0xc0135761")
e(f"v_mov_b32 v{vDacc}, 0")
for r_ in range(16):
    x=100+r_
    e(f"v_add_f32 v{x}, v{x}, v{116+r_}")
    e(f"v_add_f32 v{132+r_}, v{132+r_}, v{148+r_}")
    e(f"v_add_f32 v{x}, v{x}, v{132+r_}")
    breg=vIdx+(r_>>1); wr=vIdx+8+(r_>>1)
    e(f"v_cvt_pk_bf16_f32 v{x}, v{x}, v{x}")
    e(f"v_lshlrev_b32 v{x}, 16, v{x}")
    if r_&1: e(f"v_and_b32 v{vT1}, s33, v{breg}"); e(f"v_and_b32 v{vT2}, s33, v{wr}")
    else:    e(f"v_lshlrev_b32 v{vT1}, 16, v{breg}"); e(f"v_lshlrev_b32 v{vT2}, 16, v{wr}")
    e(f"v_add_f32 v{x}, v{x}, v{vT1}")
    e(f"v_cvt_pk_bf16_f32 v{x}, v{x}, v{x}")
    e(f"v_lshlrev_b32 v{x}, 16, v{x}")
    e(f"v_mul_f32 v{vT1}, v{x}, v{x}")
    e(f"v_fma_f32 v{vT1}, v{vT1}, s34, 1.0")
    e(f"v_mul_f32 v{vT1}, v{vT1}, v{x}")
    e(f"v_mul_f32 v{vT1}, s35, v{vT1}")
    e(f"v_exp_f32 v{vT1}, v{vT1}")
    e("s_nop 0")
    e(f"v_add_f32 v{vT1}, 1.0, v{vT1}")
    e(f"v_rcp_f32 v{vT1}, v{vT1}")
    e("s_nop 0")
    e(f"v_mul_f32 v{x}, v{x}, v{vT1}")
    e(f"v_cvt_pk_bf16_f32 v{x}, v{x}, v{x}")
    e(f"v_lshlrev_b32 v{x}, 16, v{x}")
    e(f"v_fmac_f32 v{vDacc}, v{x}, v{vT2}")
e(f"v_mov_b32 v{vDacc+1}, v{vDacc}")
e("s_nop 1")
e(f"v_permlane32_swap_b32 v{vDacc}, v{vDacc+1}")
e("s_nop 1")
e(f"v_add_f32 v{vDacc}, v{vDacc}, v{vDacc+1}")
e("s_lshl_b32 s33, s2, 9")
e("s_lshl_b32 s34, s24, 7")
e("s_add_u32 s33, s33, s34")
e(f"v_lshl_add_u32 v{vT0}, v1, 2, s33")
e("s_mov_b64 exec, 0xffffffff")
e(f"global_store_dword v{vT0}, v{vDacc}, s[22:23] sc1")
e("s_mov_b64 exec, -1")
e("s_waitcnt vmcnt(0)")
e("s_barrier")
e("s_cmp_lg_u32 s24, 0")
e("s_cbranch_scc1 L_end")
e("s_lshl_b32 s33, s25, 2")
e(f"v_mov_b32 v{vT0}, s33")
e(f"v_mov_b32 v{vT1}, 1")
e("s_mov_b64 exec, 1")
e(f"global_atomic_add v{vT2}, v{vT0}, v{vT1}, s[20:21] sc0 sc1")
e("s_waitcnt vmcnt(0)")
e(f"v_readfirstlane_b32 s33, v{vT2}")
e("s_mov_b64 exec, -1")
e("s_cmp_lg_u32 s33, 7")
e("s_cbranch_scc1 L_end")
e("s_lshl_b32 s33, s25, 12")
e(f"v_lshl_add_u32 v{vT0}, v1, 3, s33")
for j in range(8):
    e(f"global_load_dwordx2 v[{100+2*j}:{101+2*j}], v{vT0}, s[22:23] offset:{512*j} sc1")
e("s_lshl_b32 s33, s25, 9")
e("s_add_u32 s33, s33, 131072")
e(f"v_lshl_add_u32 v{vT1}, v1, 3, s33")
e(f"global_load_dwordx2 v[116:117], v{vT1}, s[22:23] sc1")
e(f"v_mov_b32 v{vT2}, 0")
e(f"global_load_ushort v118, v{vT2}, s[16:17]")
e("s_waitcnt vmcnt(0)")
e("v_lshlrev_b32 v118, 16, v118")
for d in range(2):
    for j in range(1,8): e(f"v_add_f32 v{100+d}, v{100+d}, v{100+2*j+d}")
    for rr in (100+d,116+d):
        e(f"v_cvt_pk_bf16_f32 v{rr}, v{rr}, v{rr}"); e(f"v_lshlrev_b32 v{rr}, 16, v{rr}")
    e(f"v_add_f32 v{100+d}, v{100+d}, v118")
    e(f"v_cvt_pk_bf16_f32 v{100+d}, v{100+d}, v{100+d}"); e(f"v_lshlrev_b32 v{100+d}, 16, v{100+d}")
    e(f"v_add_f32 v{100+d}, v{100+d}, v{116+d}")
e("v_cvt_pk_bf16_f32 v100, v100, v101")
e("s_lshl_b32 s33, s25, 8")
e(f"v_lshl_add_u32 v{vT0}, v1, 2, s33")
e(f"global_store_dword v{vT0}, v100, s[18:19]")
e("s_waitcnt vmcnt(0)")
lab("L_end")

src=open('standalone__deep_cross_pnn__recsys.s.ref').read().split('\n')
out=[]
for ln in src:
    if ln.startswith('; @launch'): out.append('; @launch grid=(256,1,1) block=(256,1,1) lds=163840'); continue
    out.append(ln)
    if ln.startswith('standalone__deep_cross_pnn__recsys_kernel:'): break
out+=L
out.append('s_endpgm')
i=src.index('s_endpgm')
for ln in src[i+1:]:
    ln=ln.replace('next_free_vgpr 256','next_free_vgpr 512')
    out.append(ln)
open('standalone__deep_cross_pnn__recsys.s','w').write('\n'.join(out))
```

```python
import sys
L=[]
NST=[0]
def stamp():
    e(f"s_memtime s[{60+2*NST[0]}:{61+2*NST[0]}]"); e("s_waitcnt lgkmcnt(0)"); NST[0]+=1

def e(s): L.append("    "+s)
def lab(s): L.append(s+":")
class Trk:
    def __init__(s,name): s.n=0; s.name=name
    def issue(s): s.n+=1; return s.n
    def wait(s,tok):
        k=s.n-tok
        e(f"s_waitcnt {s.name}({k})")
VM=Trk("vmcnt"); LG=Trk("lgkmcnt")
R0=128000
vL=1; vT0=2; vT1=3; vT2=4; vT3=5
vTabOff=6; vWpOff=7; vW1=8; vW2=9; vBoff=10; vB=11; vH16=12; vS16=13
vIoff=14
vPoff=18
vDacc=20
vD=24
vPk=40
vEb=42
vE=60
vWf=92
vWt=100
vIdx=198
vPidx=230
vB1=60; vW2e=68
aAcc=0; aP=64

e("s_cmp_ge_u32 s2, 256")
e("s_cbranch_scc1 L_end")
e("s_load_dwordx16 s[4:19], s[0:1], 0")
e("s_load_dwordx4 s[20:23], s[0:1], 64")
stamp(); e("v_and_b32 v1, 63, v0")
e("v_lshrrev_b32 v2, 6, v0")
e("s_nop 0")
e("v_readfirstlane_b32 s24, v2")
e("s_lshr_b32 s25, s2, 3")
e("s_and_b32 s26, s2, 7")
e("s_lshl_b32 s27, s25, 7")
e("v_and_b32 v2, 7, v1")
e("v_lshrrev_b32 v3, 4, v1")
e("s_and_b32 s28, s24, 1")
e("s_lshl_b32 s28, s28, 2")
e("v_add_u32 v4, s28, v3")
e("v_and_b32 v4, 7, v4")
e("v_xor_b32 v2, v2, v4")
e("v_lshlrev_b32 v2, 4, v2")
e("v_lshrrev_b32 v4, 3, v1")
e(f"v_lshl_or_b32 v{vTabOff}, v4, 7, v2")
e(f"v_lshlrev_b32 v{vWpOff}, 4, v1")
e("v_and_b32 v2, 15, v1")
e("v_lshrrev_b32 v4, 2, v2")
e("v_lshl_add_u32 v4, v3, 2, v4")
e("s_movk_i32 s29, 200")
e("v_mul_lo_u32 v4, v4, s29")
e("v_and_b32 v5, 3, v1")
e("v_lshl_add_u32 v4, v5, 3, v4")
e(f"v_add_u32 v{vW1}, {R0}, v4")
e("v_mul_lo_u32 v4, v2, s29")
e("v_lshl_add_u32 v4, v3, 3, v4")
e(f"v_add_u32 v{vW2}, {R0}, v4")
e("v_lshrrev_b32 v4, 2, v1")
e("v_lshlrev_b32 v4, 9, v4")
e(f"v_lshl_add_u32 v{vBoff}, v5, 4, v4")
e("v_lshrrev_b32 v4, 5, v1")
e(f"v_lshlrev_b32 v{vH16}, 4, v4")
e(f"v_lshlrev_b32 v{vS16}, 4, v3")
e("v_lshrrev_b32 v4, 2, v2")
e(f"v_lshrrev_b32 v2, 1, v{vH16}")
e("v_add_u32 v4, v4, v2")
e("v_lshlrev_b32 v4, 6, v4")
e("v_and_b32 v2, 1, v3")
e("v_lshl_add_u32 v4, v2, 5, v4")
e("v_lshl_add_u32 v4, v5, 3, v4")
e("s_lshl_b32 s30, s24, 13")
e(f"s_add_u32 s30, s30, {R0}")
e(f"v_add_u32 v{vB}, s30, v4")
e("v_and_b32 v2, 31, v1")
e("v_add_u32 v2, s27, v2")
e("s_movk_i32 s29, 400")
e("v_mul_lo_u32 v2, v2, s29")
e("s_mul_i32 s31, s24, 100")
e("v_add_u32 v2, s31, v2")
for t in range(4):
    e(f"v_add_u32 v{vIoff+t}, {t*32*400}, v2")
e("s_lshl_b32 s31, s26, 4")
e("s_add_u32 s31, s31, s27")
e("s_lshl_b32 s32, s24, 2")
e("s_add_u32 s31, s31, s32")
e("s_mul_i32 s32, s31, 400")
e("v_and_b32 v2, 15, v1")
e(f"v_lshl_add_u32 v{vPoff}, v2, 2, s32")
e("s_waitcnt lgkmcnt(0)")
e("s_mov_b32 s36, s8"); e("s_mov_b32 s37, s9"); e("s_mov_b32 s38, 20000"); e("s_mov_b32 s39, 0x00020000")
e("s_mul_i32 s33, s25, 200"); e("s_mul_i32 s34, s24, 50"); e("s_add_u32 s33, s33, s34")
e("v_min_u32 v2, 49, v1"); e("v_add_u32 v2, s33, v2"); e("v_lshlrev_b32 v2, 9, v2")
e("s_lshl_b32 s34, s26, 6"); e("v_add_u32 v2, s34, v2")
e("global_load_dword v250, v2, s[10:11]")
e("s_lshl_b32 s33, s24, 10")
e("s_add_u32 s40, s6, s33"); e("s_addc_u32 s41, s7, 0")
e("s_mov_b32 s34, s33")
for j in range(32):
    if j==31:
        e("s_cmp_lg_u32 s24, 0"); e("s_cbranch_scc1 L_tabdone")
    e("s_mov_b32 m0, s34")
    e("s_nop 0")
    e(f"global_load_lds_dwordx4 v{vTabOff}, s[40:41]")
    e("s_add_u32 s40, s40, 4096"); e("s_addc_u32 s41, s41, 0")
    e("s_add_u32 s34, s34, 4096")
lab("L_tabdone")
e(f"s_add_u32 s34, s33, {R0}")
for j in range(5):
    e("s_mov_b32 m0, s34")
    e("s_nop 0")
    e(f"buffer_load_dwordx4 v{vWpOff}, s[36:39], s33 offen lds")
    e("s_add_u32 s33, s33, 4096"); e("s_add_u32 s34, s34, 4096")
e("s_waitcnt vmcnt(0)")
e("s_barrier")
stamp()
tiles=[(ti,tj) for ti in range(7) for tj in range(ti,7)]
wreg={}; r=vWt
for (ti,tj) in tiles:
    wreg[(ti,tj,1)]=r; r+=2
    e(f"ds_read_b64_tr_b16 v[{r-2}:{r-1}], v{vW1} offset:{ti*3200+tj*32}")
    if ti!=tj:
        wreg[(ti,tj,2)]=r; r+=2
        e(f"ds_read_b64 v[{r-2}:{r-1}], v{vW2} offset:{tj*3200+ti*32}")
    if (len(wreg)%12)==0: e("s_waitcnt lgkmcnt(0)")
assert r==vWt+98
e("v_and_b32 v2, 15, v1")
e("v_cmp_gt_u32 s[42:43], 4, v2")
e("v_cmp_gt_u32 s[44:45], 16, v1")
e("s_and_b64 s[44:45], s[44:45], s[42:43]")
e("s_waitcnt lgkmcnt(0)")
e("s_barrier")
for (ti,tj) in tiles:
    if tj==6:
        m="s[44:45]" if ti==6 else "s[42:43]"
        for k in (1,2):
            if (ti,tj,k) in wreg:
                for d in range(2):
                    rr=wreg[(ti,tj,k)]+d
                    e(f"v_cndmask_b32 v{rr}, 0, v{rr}, {m}")
e("s_mul_i32 s33, s24, 819200")
e("s_lshl_b32 s34, s26, 6")
e("s_add_u32 s33, s33, s34")
e("s_add_u32 s40, s10, s33"); e("s_addc_u32 s41, s11, 0")
dmaTok={}
def dmaB(u):
    e(f"s_add_u32 m0, s30, {(u&7)*1024}")
    e("s_nop 0")
    e(f"global_load_lds_dwordx4 v{vBoff}, s[40:41]")
    dmaTok[u]=VM.issue()
    e("s_add_u32 s40, s40, 8192"); e("s_addc_u32 s41, s41, 0")
idxTok={}
def idxload(G):
    buf=vIdx+(G&1)*16
    for t in range(4):
        if G<6: e(f"global_load_dwordx4 v[{buf+4*t}:{buf+4*t+3}], v{vIoff+t}, s[4:5] offset:{G*16}")
        else:   e(f"global_load_dword v{buf+4*t}, v{vIoff+t}, s[4:5] offset:{G*16}")
        idxTok[G]=VM.issue()
pTok={}
def pidx(q):
    buf=vPidx+(q&1)*7
    for t in range(7):
        if t<6: e(f"global_load_dword v{buf+t}, v{vPoff}, s[4:5] offset:{q*400+t*64}")
        else:
            e(f"global_load_dword v{buf+t}, v{vT3}, s[4:5] offset:{q*400+t*64}")
        pTok[q]=VM.issue()
e("v_and_b32 v2, 15, v1"); e("v_min_u32 v2, 3, v2"); e(f"v_lshl_add_u32 v{vT3}, v2, 2, s32")
pidx(0); pidx(1)
for u in range(7): dmaB(u)
idxload(0)
stamp()
def addr_base(dst,src,xr):
    e(f"v_bfe_u32 v{vT0}, v{src}, 1, 3")
    e(f"v_lshlrev_b32 v{vT1}, 7, v{src}")
    e(f"v_lshl_or_b32 v{vT0}, v{vT0}, 4, v{vT1}")
    e(f"v_xor_b32 v{dst}, v{vT0}, v{xr}")
def pnn_reads(q):
    VM.wait(pTok[q])
    buf=vPidx+(q&1)*7; a=aP+(q&1)*56
    for t in range(7):
        addr_base(vEb,buf+t,vS16)
        e(f"v_xor_b32 v{vEb+1}, 64, v{vEb}")
        e(f"ds_read_b128 a[{a+8*t}:{a+8*t+3}], v{vEb}")
        e(f"ds_read_b128 a[{a+8*t+4}:{a+8*t+7}], v{vEb+1}")
    if q+2<4: pidx(q+2)
def pnn_valu(k,ti,tj):
    d=vD+(k&3)*4
    e(f"v_cvt_pk_bf16_f32 v{vPk}, v{d}, v{d+1}")
    e(f"v_cvt_pk_bf16_f32 v{vPk+1}, v{d+2}, v{d+3}")
    w=wreg[(ti,tj,1)]
    e(f"v_dot2_f32_bf16 v{vDacc}, v{vPk}, v{w}, v{vDacc}")
    e(f"v_dot2_f32_bf16 v{vDacc+1}, v{vPk+1}, v{w+1}, v{vDacc+1}")
    if ti!=tj:
        w=wreg[(ti,tj,2)]
        e(f"v_dot2_f32_bf16 v{vDacc+2}, v{vPk}, v{w}, v{vDacc+2}")
        e(f"v_dot2_f32_bf16 v{vDacc+3}, v{vPk+1}, v{w+1}, v{vDacc+3}")
pnn_reads(0)
for q in range(4):
    e("s_waitcnt lgkmcnt(0)")
    if q<3: pnn_reads(q+1)
    a=aP+(q&1)*56
    for i in range(4): e(f"v_mov_b32 v{vDacc+i}, 0")
    for k,(ti,tj) in enumerate(tiles):
        d=vD+(k&3)*4
        e(f"v_mfma_f32_16x16x32_bf16 v[{d}:{d+3}], a[{a+8*ti}:{a+8*ti+3}], a[{a+8*tj}:{a+8*tj+3}], 0")
        e(f"v_mfma_f32_16x16x32_bf16 v[{d}:{d+3}], a[{a+8*ti+4}:{a+8*ti+7}], a[{a+8*tj+4}:{a+8*tj+7}], v[{d}:{d+3}]")
        if k>=2:
            if k==2: e("s_nop 4")
            pnn_valu(k-2,*tiles[k-2])
    e("s_nop 7"); e("s_nop 3")
    pnn_valu(26,*tiles[26]); pnn_valu(27,*tiles[27])
    e("s_nop 3")
    e(f"v_add_f32 v{vDacc}, v{vDacc}, v{vDacc+1}")
    e(f"v_add_f32 v{vDacc+2}, v{vDacc+2}, v{vDacc+3}")
    e(f"v_add_f32 v{vT0}, v{vDacc}, v{vDacc+2}")
    for sh in (1,2,4,8):
        e("s_nop 1")
        e(f"v_add_f32_dpp v{vT0}, v{vT0}, v{vT0} row_shr:{sh} row_mask:0xf bank_mask:0xf bound_ctrl:0")
    e("s_nop 1")
    for i,ln in enumerate((15,31,47,63)): e(f"v_readlane_b32 s{46+i}, v{vT0}, {ln}")
    e("s_nop 3")
    e(f"v_mov_b32 v{vT0}, s46")
    for i in (47,48,49): e(f"v_add_f32 v{vT0}, s{i}, v{vT0}")
    e("s_lshl_b32 s50, s31, 2")
    e("s_add_u32 s50, s50, 131072")
    e(f"v_mov_b32 v{vT1}, s50")
    e("s_mov_b64 exec, 1")
    e(f"global_store_dword v{vT1}, v{vT0}, s[22:23] offset:{q*4} sc1"); VM.issue()
    e("s_mov_b64 exec, -1")
stamp()
lgTok={}
def mlp_reads(u):
    f,s=u>>2,u&3
    if s==0:
        G=f>>2
        if (f&3)==0:
            VM.wait(idxTok[G])
            if G+1<7: idxload(G+1)
        buf=vIdx+(G&1)*16
        for t in range(4):
            addr_base(vEb+4*t,buf+4*t+(f&3),vH16)
            for ss in (1,2,3): e(f"v_xor_b32 v{vEb+4*t+ss}, {32*ss}, v{vEb+4*t}")
    VM.wait(dmaTok[u])
    eb=vE+(u&1)*16; wb=vWf+(u&1)*4
    e(f"ds_read_b64_tr_b16 v[{wb}:{wb+1}], v{vB} offset:{(u&7)*1024}"); LG.issue()
    e(f"ds_read_b64_tr_b16 v[{wb+2}:{wb+3}], v{vB} offset:{(u&7)*1024+256}"); LG.issue()
    for t in range(4):
        e(f"ds_read_b128 v[{eb+4*t}:{eb+4*t+3}], v{vEb+4*t+s}"); lgTok[u]=LG.issue()
LG.n=0
mlp_reads(0)
for u in range(100):
    if u+1<100: mlp_reads(u+1)
    LG.wait(lgTok[u])
    eb=vE+(u&1)*16; wb=vWf+(u&1)*4
    for t in range(4):
        c="0" if u==0 else f"a[{16*t}:{16*t+15}]"
        e(f"v_mfma_f32_32x32x16_bf16 a[{16*t}:{16*t+15}], v[{wb}:{wb+3}], v[{eb+4*t}:{eb+4*t+3}], {c}")
    if u+7<100: dmaB(u+7)
stamp()
e("s_lshl_b32 s33, s26, 6")
e(f"v_lshrrev_b32 v{vT0}, 1, v{vH16}")
e(f"v_add_u32 v{vT0}, s33, v{vT0}")
for q in range(4):
    e(f"global_load_dwordx2 v[{vIdx+2*q}:{vIdx+2*q+1}], v{vT0}, s[12:13] offset:{16*q}")
    e(f"global_load_dwordx2 v[{vIdx+8+2*q}:{vIdx+8+2*q+1}], v{vT0}, s[14:15] offset:{16*q}")
e("s_nop 7"); e("s_nop 7")
e("s_barrier")
e("s_lshl_b32 s33, s24, 14")
e(f"v_lshl_add_u32 v{vT0}, v1, 4, s33")
for t in range(4):
    for q in range(4):
        e(f"ds_write_b128 v{vT0}, a[{16*t+4*q}:{16*t+4*q+3}] offset:{t*4096+q*1024}")
e("s_waitcnt lgkmcnt(0)")
e("s_barrier")
e("s_lshl_b32 s33, s24, 12")
e(f"v_lshl_add_u32 v{vT0}, v1, 4, s33")
for wv in range(4):
    for q in range(4):
        e(f"ds_read_b128 v[{100+16*wv+4*q}:{100+16*wv+4*q+3}], v{vT0} offset:{wv*16384+q*1024}")
e("s_waitcnt lgkmcnt(0) vmcnt(0)")
e("s_mov_b32 s33, 0xffff0000")
e("s_mov_b32 s34, 0x3d372713")
e("s_mov_b32 s35, 0xc0135761")
e(f"v_mov_b32 v{vDacc}, 0")
for r_ in range(16):
    x=100+r_
    e(f"v_add_f32 v{x}, v{x}, v{116+r_}")
    e(f"v_add_f32 v{132+r_}, v{132+r_}, v{148+r_}")
    e(f"v_add_f32 v{x}, v{x}, v{132+r_}")
    breg=vIdx+(r_>>1); wr=vIdx+8+(r_>>1)
    e(f"v_cvt_pk_bf16_f32 v{x}, v{x}, v{x}")
    e(f"v_lshlrev_b32 v{x}, 16, v{x}")
    if r_&1: e(f"v_and_b32 v{vT1}, s33, v{breg}"); e(f"v_and_b32 v{vT2}, s33, v{wr}")
    else:    e(f"v_lshlrev_b32 v{vT1}, 16, v{breg}"); e(f"v_lshlrev_b32 v{vT2}, 16, v{wr}")
    e(f"v_add_f32 v{x}, v{x}, v{vT1}")
    e(f"v_cvt_pk_bf16_f32 v{x}, v{x}, v{x}")
    e(f"v_lshlrev_b32 v{x}, 16, v{x}")
    e(f"v_mul_f32 v{vT1}, v{x}, v{x}")
    e(f"v_fma_f32 v{vT1}, v{vT1}, s34, 1.0")
    e(f"v_mul_f32 v{vT1}, v{vT1}, v{x}")
    e(f"v_mul_f32 v{vT1}, s35, v{vT1}")
    e(f"v_exp_f32 v{vT1}, v{vT1}")
    e("s_nop 0")
    e(f"v_add_f32 v{vT1}, 1.0, v{vT1}")
    e(f"v_rcp_f32 v{vT1}, v{vT1}")
    e("s_nop 0")
    e(f"v_mul_f32 v{x}, v{x}, v{vT1}")
    e(f"v_cvt_pk_bf16_f32 v{x}, v{x}, v{x}")
    e(f"v_lshlrev_b32 v{x}, 16, v{x}")
    e(f"v_fmac_f32 v{vDacc}, v{x}, v{vT2}")
e(f"v_mov_b32 v{vDacc+1}, v{vDacc}")
e("s_nop 1")
e(f"v_permlane32_swap_b32 v{vDacc}, v{vDacc+1}")
e("s_nop 1")
e(f"v_add_f32 v{vDacc}, v{vDacc}, v{vDacc+1}")
e("s_lshl_b32 s33, s2, 9")
e("s_lshl_b32 s34, s24, 7")
e("s_add_u32 s33, s33, s34")
e(f"v_lshl_add_u32 v{vT0}, v1, 2, s33")
e("s_mov_b64 exec, 0xffffffff")
e(f"global_store_dword v{vT0}, v{vDacc}, s[22:23] sc1")
e("s_mov_b64 exec, -1")
e("s_waitcnt vmcnt(0)")
e("s_barrier")
stamp()
e("s_cmp_lg_u32 s24, 0")
e("s_cbranch_scc1 L_end")
e("s_cmp_lg_u32 s2, 0")
e("s_cbranch_scc1 L_nodump")
e("s_mov_b64 exec, 1")
for i in range(NST[0]):
    e(f"s_sub_u32 s33, s{60+2*i}, s60"); e(f"v_mov_b32 v{vT0}, s33"); e(f"v_mov_b32 v{vT1}, {4*i}")
    e(f"global_store_dword v{vT1}, v{vT0}, s[20:21]")
e("s_mov_b64 exec, -1")
lab("L_nodump")
e("s_lshl_b32 s33, s25, 2")
e("s_add_u32 s33, s33, 128")
e(f"v_mov_b32 v{vT0}, s33")
e(f"v_mov_b32 v{vT1}, 1")
e("s_mov_b64 exec, 1")
e(f"global_atomic_add v{vT2}, v{vT0}, v{vT1}, s[20:21] sc0 sc1")
e("s_waitcnt vmcnt(0)")
e(f"v_readfirstlane_b32 s33, v{vT2}")
e("s_mov_b64 exec, -1")
e("s_cmp_lg_u32 s33, 7")
e("s_cbranch_scc1 L_end")
e("s_lshl_b32 s33, s25, 12")
e(f"v_lshl_add_u32 v{vT0}, v1, 3, s33")
for j in range(8):
    e(f"global_load_dwordx2 v[{100+2*j}:{101+2*j}], v{vT0}, s[22:23] offset:{512*j} sc1")
e("s_lshl_b32 s33, s25, 9")
e("s_add_u32 s33, s33, 131072")
e(f"v_lshl_add_u32 v{vT1}, v1, 3, s33")
e(f"global_load_dwordx2 v[116:117], v{vT1}, s[22:23] sc1")
e(f"v_mov_b32 v{vT2}, 0")
e(f"global_load_ushort v118, v{vT2}, s[16:17]")
e("s_waitcnt vmcnt(0)")
e("v_lshlrev_b32 v118, 16, v118")
for d in range(2):
    for j in range(1,8): e(f"v_add_f32 v{100+d}, v{100+d}, v{100+2*j+d}")
    for rr in (100+d,116+d):
        e(f"v_cvt_pk_bf16_f32 v{rr}, v{rr}, v{rr}"); e(f"v_lshlrev_b32 v{rr}, 16, v{rr}")
    e(f"v_add_f32 v{100+d}, v{100+d}, v118")
    e(f"v_cvt_pk_bf16_f32 v{100+d}, v{100+d}, v{100+d}"); e(f"v_lshlrev_b32 v{100+d}, 16, v{100+d}")
    e(f"v_add_f32 v{100+d}, v{100+d}, v{116+d}")
e("v_cvt_pk_bf16_f32 v100, v100, v101")
e("s_lshl_b32 s33, s25, 8")
e(f"v_lshl_add_u32 v{vT0}, v1, 2, s33")
e(f"global_store_dword v{vT0}, v100, s[18:19]")
e("s_waitcnt vmcnt(0)")
lab("L_end")

src=open('standalone__deep_cross_pnn__recsys.s.ref').read().split('\n')
out=[]
for ln in src:
    if ln.startswith('; @launch'): out.append('; @launch grid=(256,1,1) block=(256,1,1) lds=163840'); continue
    out.append(ln)
    if ln.startswith('standalone__deep_cross_pnn__recsys_kernel:'): break
out+=L
out.append('s_endpgm')
i=src.index('s_endpgm')
for ln in src[i+1:]:
    ln=ln.replace('next_free_vgpr 256','next_free_vgpr 512')
    out.append(ln)
open('standalone__deep_cross_pnn__recsys_diag.s','w').write('\n'.join(out))
```

```python
import sys
L=[]
def e(s): L.append("    "+s)
def lab(s): L.append(s+":")
class Trk:
    def __init__(s,name): s.n=0; s.name=name
    def issue(s): s.n+=1; return s.n
    def wait(s,tok):
        k=s.n-tok
        e(f"s_waitcnt {s.name}({k})")
VM=Trk("vmcnt"); LG=Trk("lgkmcnt")
R0=128000
vL=1; vT0=2; vT1=3; vT2=4; vT3=5
vTabOff=6; vWpOff=7; vW1=8; vW2=9; vBoff=10; vB=11; vH16=12; vS16=13
vIoff=14
vPoff=18
vDacc=20
vD=24
vPk=40
vEb=42
vE=60
vWf=92
vWt=100
vIdx=212
vPidx=60
vB1=60; vW2e=68
aAcc=0; aP=64

e("s_cmp_ge_u32 s2, 256")
e("s_cbranch_scc1 L_end")
e("s_load_dwordx16 s[4:19], s[0:1], 0")
e("s_load_dwordx4 s[20:23], s[0:1], 64")
e("v_and_b32 v1, 63, v0")
e("v_lshrrev_b32 v2, 6, v0")
e("s_nop 0")
e("v_readfirstlane_b32 s24, v2")
e("s_lshr_b32 s25, s2, 3")
e("s_and_b32 s26, s2, 7")
e("s_lshl_b32 s27, s25, 7")
e("v_and_b32 v2, 7, v1")
e("v_lshrrev_b32 v3, 4, v1")
e("s_and_b32 s28, s24, 1")
e("s_lshl_b32 s28, s28, 2")
e("v_add_u32 v4, s28, v3")
e("v_and_b32 v4, 7, v4")
e("v_xor_b32 v2, v2, v4")
e("v_lshlrev_b32 v2, 4, v2")
e("v_lshrrev_b32 v4, 3, v1")
e(f"v_lshl_or_b32 v{vTabOff}, v4, 7, v2")
e(f"v_lshlrev_b32 v{vWpOff}, 4, v1")
e("v_and_b32 v2, 15, v1")
e("v_lshrrev_b32 v4, 2, v2")
e("v_lshl_add_u32 v4, v3, 2, v4")
e("s_movk_i32 s29, 200")
e("v_mul_lo_u32 v4, v4, s29")
e("v_and_b32 v5, 3, v1")
e("v_lshl_add_u32 v4, v5, 3, v4")
e(f"v_add_u32 v{vW1}, {R0}, v4")
e("v_mul_lo_u32 v4, v2, s29")
e("v_lshl_add_u32 v4, v3, 3, v4")
e(f"v_add_u32 v{vW2}, {R0}, v4")
e("v_lshrrev_b32 v4, 2, v1")
e("v_lshlrev_b32 v4, 9, v4")
e(f"v_lshl_add_u32 v{vBoff}, v5, 4, v4")
e("v_lshrrev_b32 v4, 5, v1")
e(f"v_lshlrev_b32 v{vH16}, 4, v4")
e(f"v_lshlrev_b32 v{vS16}, 4, v3")
e("v_lshrrev_b32 v4, 2, v2")
e(f"v_lshrrev_b32 v2, 1, v{vH16}")
e("v_add_u32 v4, v4, v2")
e("v_lshlrev_b32 v4, 6, v4")
e("v_and_b32 v2, 1, v3")
e("v_lshl_add_u32 v4, v2, 5, v4")
e("v_lshl_add_u32 v4, v5, 3, v4")
e("s_lshl_b32 s30, s24, 13")
e(f"s_add_u32 s30, s30, {R0}")
e(f"v_add_u32 v{vB}, s30, v4")
e("v_and_b32 v2, 31, v1")
e("v_add_u32 v2, s27, v2")
e("s_movk_i32 s29, 400")
e("v_mul_lo_u32 v2, v2, s29")
e("s_mul_i32 s31, s24, 100")
e("v_add_u32 v2, s31, v2")
for t in range(4):
    e(f"v_add_u32 v{vIoff+t}, {t*32*400}, v2")
e("s_lshl_b32 s31, s26, 4")
e("s_add_u32 s31, s31, s27")
e("s_lshl_b32 s32, s24, 2")
e("s_add_u32 s31, s31, s32")
e("s_mul_i32 s32, s31, 400")
e("v_and_b32 v2, 15, v1")
e(f"v_lshl_add_u32 v{vPoff}, v2, 2, s32")
e("s_waitcnt lgkmcnt(0)")
e("s_mov_b32 s36, s8"); e("s_mov_b32 s37, s9"); e("s_mov_b32 s38, 20000"); e("s_mov_b32 s39, 0x00020000")
e("s_mul_i32 s33, s25, 200"); e("s_mul_i32 s34, s24, 50"); e("s_add_u32 s33, s33, s34")
e("v_min_u32 v2, 49, v1"); e("v_add_u32 v2, s33, v2"); e("v_lshlrev_b32 v2, 9, v2")
e("s_lshl_b32 s34, s26, 6"); e("v_add_u32 v2, s34, v2")
e("global_load_dword v250, v2, s[10:11]")
e("s_lshl_b32 s33, s24, 10")
e("s_add_u32 s40, s6, s33"); e("s_addc_u32 s41, s7, 0")
e("s_mov_b32 s34, s33")
for j in range(32):
    if j==31:
        e("s_cmp_lg_u32 s24, 0"); e("s_cbranch_scc1 L_tabdone")
    e("s_mov_b32 m0, s34")
    e("s_nop 0")
    e(f"global_load_lds_dwordx4 v{vTabOff}, s[40:41]")
    e("s_add_u32 s40, s40, 4096"); e("s_addc_u32 s41, s41, 0")
    e("s_add_u32 s34, s34, 4096")
lab("L_tabdone")
e(f"s_add_u32 s34, s33, {R0}")
for j in range(5):
    e("s_mov_b32 m0, s34")
    e("s_nop 0")
    e(f"buffer_load_dwordx4 v{vWpOff}, s[36:39], s33 offen lds")
    e("s_add_u32 s33, s33, 4096"); e("s_add_u32 s34, s34, 4096")
e("s_waitcnt vmcnt(0)")
e("s_barrier")
tiles=[(ti,tj) for ti in range(7) for tj in range(ti,7)]
wreg={}
e("v_and_b32 v2, 15, v1")
e("v_cmp_gt_u32 s[42:43], 4, v2")
e("v_cmp_gt_u32 s[44:45], 16, v1")
e("s_and_b64 s[44:45], s[44:45], s[42:43]")
e("s_mov_b32 s46, 0xffff0000")
for b0 in range(0,28,7):
    batch=tiles[b0:b0+7]
    for k,(ti,tj) in enumerate(batch):
        t=60+4*k
        e(f"ds_read_b64_tr_b16 v[{t}:{t+1}], v{vW1} offset:{ti*3200+tj*32}")
        if ti!=tj: e(f"ds_read_b64 v[{t+2}:{t+3}], v{vW2} offset:{tj*3200+ti*32}")
    e("s_waitcnt lgkmcnt(0)")
    for k,(ti,tj) in enumerate(batch):
        t=60+4*k; r=vWt+4*(b0+k); wreg[(ti,tj)]=r
        for d in range(2):
            e(f"v_lshlrev_b32 v{r+2*d}, 16, v{t+d}")
            e(f"v_and_b32 v{r+2*d+1}, s46, v{t+d}")
            if ti!=tj:
                e(f"v_lshlrev_b32 v{vT0}, 16, v{t+2+d}")
                e(f"v_and_b32 v{vT1}, s46, v{t+2+d}")
                e(f"v_add_f32 v{r+2*d}, v{r+2*d}, v{vT0}")
                e(f"v_add_f32 v{r+2*d+1}, v{r+2*d+1}, v{vT1}")
        if tj==6:
            m="s[44:45]" if ti==6 else "s[42:43]"
            for d in range(4): e(f"v_cndmask_b32 v{r+d}, 0, v{r+d}, {m}")
e("s_barrier")
e("s_mul_i32 s33, s24, 819200")
e("s_lshl_b32 s34, s26, 6")
e("s_add_u32 s33, s33, s34")
e("s_add_u32 s40, s10, s33"); e("s_addc_u32 s41, s11, 0")
dmaTok={}
def dmaB(u):
    e(f"s_add_u32 m0, s30, {(u&7)*1024}")
    e("s_nop 0")
    e(f"global_load_lds_dwordx4 v{vBoff}, s[40:41]")
    dmaTok[u]=VM.issue()
    e("s_add_u32 s40, s40, 8192"); e("s_addc_u32 s41, s41, 0")
idxTok={}
def idxload(G):
    buf=vIdx+(G&1)*16
    for t in range(4):
        if G<6: e(f"global_load_dwordx4 v[{buf+4*t}:{buf+4*t+3}], v{vIoff+t}, s[4:5] offset:{G*16}")
        else:   e(f"global_load_dword v{buf+4*t}, v{vIoff+t}, s[4:5] offset:{G*16}")
        idxTok[G]=VM.issue()
pTok={}
def pidx(q):
    buf=vPidx+(q&1)*7
    for t in range(7):
        if t<6: e(f"global_load_dword v{buf+t}, v{vPoff}, s[4:5] offset:{q*400+t*64}")
        else:
            e(f"global_load_dword v{buf+t}, v{vT3}, s[4:5] offset:{q*400+t*64}")
        pTok[q]=VM.issue()
e("v_and_b32 v2, 15, v1"); e("v_min_u32 v2, 3, v2"); e(f"v_lshl_add_u32 v{vT3}, v2, 2, s32")
pidx(0); pidx(1)
for u in range(7): dmaB(u)
idxload(0)
def addr_base(dst,src,xr):
    e(f"v_bfe_u32 v{vT0}, v{src}, 1, 3")
    e(f"v_lshlrev_b32 v{vT1}, 7, v{src}")
    e(f"v_lshl_or_b32 v{vT0}, v{vT0}, 4, v{vT1}")
    e(f"v_xor_b32 v{dst}, v{vT0}, v{xr}")
def pnn_reads(q):
    VM.wait(pTok[q])
    buf=vPidx+(q&1)*7; a=aP+(q&1)*56
    for t in range(7):
        addr_base(vEb,buf+t,vS16)
        e(f"v_xor_b32 v{vEb+1}, 64, v{vEb}")
        e(f"ds_read_b128 a[{a+8*t}:{a+8*t+3}], v{vEb}")
        e(f"ds_read_b128 a[{a+8*t+4}:{a+8*t+7}], v{vEb+1}")
    if q+2<4: pidx(q+2)
def pnn_valu(k,ti,tj):
    d=vD+(k&3)*4; w=wreg[(ti,tj)]
    e(f"v_cvt_pk_bf16_f32 v{vPk}, v{d}, v{d+1}")
    e(f"v_cvt_pk_bf16_f32 v{vPk+1}, v{d+2}, v{d+3}")
    e(f"v_lshlrev_b32 v{d}, 16, v{vPk}")
    e(f"v_and_b32 v{d+1}, s46, v{vPk}")
    e(f"v_lshlrev_b32 v{d+2}, 16, v{vPk+1}")
    e(f"v_and_b32 v{d+3}, s46, v{vPk+1}")
    for i in range(4): e(f"v_fmac_f32 v{vDacc+i}, v{d+i}, v{w+i}")
pnn_reads(0)
for q in range(4):
    e("s_waitcnt lgkmcnt(0)")
    if q<3: pnn_reads(q+1)
    a=aP+(q&1)*56
    for i in range(4): e(f"v_mov_b32 v{vDacc+i}, 0")
    for k,(ti,tj) in enumerate(tiles):
        d=vD+(k&3)*4
        e(f"v_mfma_f32_16x16x32_bf16 v[{d}:{d+3}], a[{a+8*ti}:{a+8*ti+3}], a[{a+8*tj}:{a+8*tj+3}], 0")
        e(f"v_mfma_f32_16x16x32_bf16 v[{d}:{d+3}], a[{a+8*ti+4}:{a+8*ti+7}], a[{a+8*tj+4}:{a+8*tj+7}], v[{d}:{d+3}]")
        if k>=2:
            if k==2: e("s_nop 4")
            pnn_valu(k-2,*tiles[k-2])
    e("s_nop 7"); e("s_nop 3")
    pnn_valu(26,*tiles[26]); pnn_valu(27,*tiles[27])
    e("s_nop 3")
    e(f"v_add_f32 v{vDacc}, v{vDacc}, v{vDacc+1}")
    e(f"v_add_f32 v{vDacc+2}, v{vDacc+2}, v{vDacc+3}")
    e(f"v_add_f32 v{vT0}, v{vDacc}, v{vDacc+2}")
    for sh in (1,2,4,8):
        e("s_nop 1")
        e(f"v_add_f32_dpp v{vT0}, v{vT0}, v{vT0} row_shr:{sh} row_mask:0xf bank_mask:0xf bound_ctrl:0")
    e("s_nop 1")
    for i,ln in enumerate((15,31,47,63)): e(f"v_readlane_b32 s{52+i}, v{vT0}, {ln}")
    e("s_nop 3")
    e(f"v_mov_b32 v{vT0}, s52")
    for i in (53,54,55): e(f"v_add_f32 v{vT0}, s{i}, v{vT0}")
    e("s_lshl_b32 s50, s31, 2")
    e("s_add_u32 s50, s50, 131072")
    e(f"v_mov_b32 v{vT1}, s50")
    e("s_mov_b64 exec, 1")
    e(f"global_store_dword v{vT1}, v{vT0}, s[22:23] offset:{q*4} sc1"); VM.issue()
    e("s_mov_b64 exec, -1")
lgTok={}
def mlp_reads(u):
    f,s=u>>2,u&3
    if s==0:
        G=f>>2
        if (f&3)==0:
            VM.wait(idxTok[G])
            if G+1<7: idxload(G+1)
        buf=vIdx+(G&1)*16
        for t in range(4):
            addr_base(vEb+4*t,buf+4*t+(f&3),vH16)
            for ss in (1,2,3): e(f"v_xor_b32 v{vEb+4*t+ss}, {32*ss}, v{vEb+4*t}")
    VM.wait(dmaTok[u])
    eb=vE+(u&1)*16; wb=vWf+(u&1)*4
    e(f"ds_read_b64_tr_b16 v[{wb}:{wb+1}], v{vB} offset:{(u&7)*1024}"); LG.issue()
    e(f"ds_read_b64_tr_b16 v[{wb+2}:{wb+3}], v{vB} offset:{(u&7)*1024+256}"); LG.issue()
    for t in range(4):
        e(f"ds_read_b128 v[{eb+4*t}:{eb+4*t+3}], v{vEb+4*t+s}"); lgTok[u]=LG.issue()
LG.n=0
mlp_reads(0)
for u in range(100):
    if u+1<100: mlp_reads(u+1)
    LG.wait(lgTok[u])
    eb=vE+(u&1)*16; wb=vWf+(u&1)*4
    for t in range(4):
        c="0" if u==0 else f"a[{16*t}:{16*t+15}]"
        e(f"v_mfma_f32_32x32x16_bf16 a[{16*t}:{16*t+15}], v[{wb}:{wb+3}], v[{eb+4*t}:{eb+4*t+3}], {c}")
    if u+7<100: dmaB(u+7)
e("s_lshl_b32 s33, s26, 6")
e(f"v_lshrrev_b32 v{vT0}, 1, v{vH16}")
e(f"v_add_u32 v{vT0}, s33, v{vT0}")
for q in range(4):
    e(f"global_load_dwordx2 v[{vIdx+2*q}:{vIdx+2*q+1}], v{vT0}, s[12:13] offset:{16*q}")
    e(f"global_load_dwordx2 v[{vIdx+8+2*q}:{vIdx+8+2*q+1}], v{vT0}, s[14:15] offset:{16*q}")
e("s_nop 7"); e("s_nop 7")
e("s_barrier")
e("s_lshl_b32 s33, s24, 14")
e(f"v_lshl_add_u32 v{vT0}, v1, 4, s33")
for t in range(4):
    for q in range(4):
        e(f"ds_write_b128 v{vT0}, a[{16*t+4*q}:{16*t+4*q+3}] offset:{t*4096+q*1024}")
e("s_waitcnt lgkmcnt(0)")
e("s_barrier")
e("s_lshl_b32 s33, s24, 12")
e(f"v_lshl_add_u32 v{vT0}, v1, 4, s33")
for wv in range(4):
    for q in range(4):
        e(f"ds_read_b128 v[{100+16*wv+4*q}:{100+16*wv+4*q+3}], v{vT0} offset:{wv*16384+q*1024}")
e("s_waitcnt lgkmcnt(0) vmcnt(0)")
e("s_mov_b32 s33, 0xffff0000")
e("s_mov_b32 s34, 0x3d372713")
e("s_mov_b32 s35, 0xc0135761")
e(f"v_mov_b32 v{vDacc}, 0")
for r_ in range(16):
    x=100+r_
    e(f"v_add_f32 v{x}, v{x}, v{116+r_}")
    e(f"v_add_f32 v{132+r_}, v{132+r_}, v{148+r_}")
    e(f"v_add_f32 v{x}, v{x}, v{132+r_}")
    breg=vIdx+(r_>>1); wr=vIdx+8+(r_>>1)
    e(f"v_cvt_pk_bf16_f32 v{x}, v{x}, v{x}")
    e(f"v_lshlrev_b32 v{x}, 16, v{x}")
    if r_&1: e(f"v_and_b32 v{vT1}, s33, v{breg}"); e(f"v_and_b32 v{vT2}, s33, v{wr}")
    else:    e(f"v_lshlrev_b32 v{vT1}, 16, v{breg}"); e(f"v_lshlrev_b32 v{vT2}, 16, v{wr}")
    e(f"v_add_f32 v{x}, v{x}, v{vT1}")
    e(f"v_cvt_pk_bf16_f32 v{x}, v{x}, v{x}")
    e(f"v_lshlrev_b32 v{x}, 16, v{x}")
    e(f"v_mul_f32 v{vT1}, v{x}, v{x}")
    e(f"v_fma_f32 v{vT1}, v{vT1}, s34, 1.0")
    e(f"v_mul_f32 v{vT1}, v{vT1}, v{x}")
    e(f"v_mul_f32 v{vT1}, s35, v{vT1}")
    e(f"v_exp_f32 v{vT1}, v{vT1}")
    e("s_nop 0")
    e(f"v_add_f32 v{vT1}, 1.0, v{vT1}")
    e(f"v_rcp_f32 v{vT1}, v{vT1}")
    e("s_nop 0")
    e(f"v_mul_f32 v{x}, v{x}, v{vT1}")
    e(f"v_cvt_pk_bf16_f32 v{x}, v{x}, v{x}")
    e(f"v_lshlrev_b32 v{x}, 16, v{x}")
    e(f"v_fmac_f32 v{vDacc}, v{x}, v{vT2}")
e(f"v_mov_b32 v{vDacc+1}, v{vDacc}")
e("s_nop 1")
e(f"v_permlane32_swap_b32 v{vDacc}, v{vDacc+1}")
e("s_nop 1")
e(f"v_add_f32 v{vDacc}, v{vDacc}, v{vDacc+1}")
e("s_lshl_b32 s33, s2, 9")
e("s_lshl_b32 s34, s24, 7")
e("s_add_u32 s33, s33, s34")
e(f"v_lshl_add_u32 v{vT0}, v1, 2, s33")
e("s_mov_b64 exec, 0xffffffff")
e(f"global_store_dword v{vT0}, v{vDacc}, s[22:23] sc1")
e("s_mov_b64 exec, -1")
e("s_waitcnt vmcnt(0)")
e("s_barrier")
e("s_cmp_lg_u32 s24, 0")
e("s_cbranch_scc1 L_end")
e("s_lshl_b32 s33, s25, 2")
e(f"v_mov_b32 v{vT0}, s33")
e(f"v_mov_b32 v{vT1}, 1")
e("s_mov_b64 exec, 1")
e(f"global_atomic_add v{vT2}, v{vT0}, v{vT1}, s[20:21] sc0 sc1")
e("s_waitcnt vmcnt(0)")
e(f"v_readfirstlane_b32 s33, v{vT2}")
e("s_mov_b64 exec, -1")
e("s_cmp_lg_u32 s33, 7")
e("s_cbranch_scc1 L_end")
e("s_lshl_b32 s33, s25, 12")
e(f"v_lshl_add_u32 v{vT0}, v1, 3, s33")
for j in range(8):
    e(f"global_load_dwordx2 v[{100+2*j}:{101+2*j}], v{vT0}, s[22:23] offset:{512*j} sc1")
e("s_lshl_b32 s33, s25, 9")
e("s_add_u32 s33, s33, 131072")
e(f"v_lshl_add_u32 v{vT1}, v1, 3, s33")
e(f"global_load_dwordx2 v[116:117], v{vT1}, s[22:23] sc1")
e(f"v_mov_b32 v{vT2}, 0")
e(f"global_load_ushort v118, v{vT2}, s[16:17]")
e("s_waitcnt vmcnt(0)")
e("v_lshlrev_b32 v118, 16, v118")
for d in range(2):
    for j in range(1,8): e(f"v_add_f32 v{100+d}, v{100+d}, v{100+2*j+d}")
    for rr in (100+d,116+d):
        e(f"v_cvt_pk_bf16_f32 v{rr}, v{rr}, v{rr}"); e(f"v_lshlrev_b32 v{rr}, 16, v{rr}")
    e(f"v_add_f32 v{100+d}, v{100+d}, v118")
    e(f"v_cvt_pk_bf16_f32 v{100+d}, v{100+d}, v{100+d}"); e(f"v_lshlrev_b32 v{100+d}, 16, v{100+d}")
    e(f"v_add_f32 v{100+d}, v{100+d}, v{116+d}")
e("v_cvt_pk_bf16_f32 v100, v100, v101")
e("s_lshl_b32 s33, s25, 8")
e(f"v_lshl_add_u32 v{vT0}, v1, 2, s33")
e(f"global_store_dword v{vT0}, v100, s[18:19]")
e("s_waitcnt vmcnt(0)")
lab("L_end")

src=open('standalone__deep_cross_pnn__recsys.s.ref').read().split('\n')
out=[]
for ln in src:
    if ln.startswith('; @launch'): out.append('; @launch grid=(256,1,1) block=(256,1,1) lds=163840'); continue
    out.append(ln)
    if ln.startswith('standalone__deep_cross_pnn__recsys_kernel:'): break
out+=L
out.append('s_endpgm')
i=src.index('s_endpgm')
for ln in src[i+1:]:
    ln=ln.replace('next_free_vgpr 256','next_free_vgpr 512')
    out.append(ln)
open('standalone__deep_cross_pnn__recsys.s','w').write('\n'.join(out))
```

```python
import sys
L=[]
def e(s): L.append("    "+s)
def lab(s): L.append(s+":")
class Trk:
    def __init__(s,name): s.n=0; s.name=name
    def issue(s): s.n+=1; return s.n
    def wait(s,tok):
        k=s.n-tok
        e(f"s_waitcnt {s.name}({k})")
VM=Trk("vmcnt"); LG=Trk("lgkmcnt")
R0=128000
vL=1; vT0=2; vT1=3; vT2=4; vT3=5
vTabOff=6; vWpOff=7; vW1=8; vW2=9; vBoff=10; vB=11; vH16=12; vS16=13
vIoff=14
vPoff=18
vDacc=20
vD=24
vPk=40
vEb=42
vE=60
vWf=92
vWt=100
vIdx=212
vPidx=60
vB1=60; vW2e=68
aAcc=0; aP=64

e("s_cmp_ge_u32 s2, 256")
e("s_cbranch_scc1 L_end")
e("s_load_dwordx16 s[4:19], s[0:1], 0")
e("s_load_dwordx4 s[20:23], s[0:1], 64")
e("v_and_b32 v1, 63, v0")
e("v_lshrrev_b32 v2, 6, v0")
e("s_nop 0")
e("v_readfirstlane_b32 s24, v2")
e("s_lshr_b32 s25, s2, 3")
e("s_and_b32 s26, s2, 7")
e("s_lshl_b32 s27, s25, 7")
e("v_and_b32 v2, 7, v1")
e("v_lshrrev_b32 v3, 4, v1")
e("s_and_b32 s28, s24, 1")
e("s_lshl_b32 s28, s28, 2")
e("v_add_u32 v4, s28, v3")
e("v_and_b32 v4, 7, v4")
e("v_xor_b32 v2, v2, v4")
e("v_lshlrev_b32 v2, 4, v2")
e("v_lshrrev_b32 v4, 3, v1")
e(f"v_lshl_or_b32 v{vTabOff}, v4, 7, v2")
e(f"v_lshlrev_b32 v{vWpOff}, 4, v1")
e("v_and_b32 v2, 15, v1")
e("v_lshrrev_b32 v4, 2, v2")
e("v_lshl_add_u32 v4, v3, 2, v4")
e("s_movk_i32 s29, 200")
e("v_mul_lo_u32 v4, v4, s29")
e("v_and_b32 v5, 3, v1")
e("v_lshl_add_u32 v4, v5, 3, v4")
e(f"v_add_u32 v{vW1}, {R0}, v4")
e("v_mul_lo_u32 v4, v2, s29")
e("v_lshl_add_u32 v4, v3, 3, v4")
e(f"v_add_u32 v{vW2}, {R0}, v4")
e("v_lshrrev_b32 v4, 2, v1")
e("v_lshlrev_b32 v4, 9, v4")
e(f"v_lshl_add_u32 v{vBoff}, v5, 4, v4")
e("v_lshrrev_b32 v4, 5, v1")
e(f"v_lshlrev_b32 v{vH16}, 4, v4")
e(f"v_lshlrev_b32 v{vS16}, 4, v3")
e("v_lshrrev_b32 v4, 2, v2")
e(f"v_lshrrev_b32 v2, 1, v{vH16}")
e("v_add_u32 v4, v4, v2")
e("v_lshlrev_b32 v4, 6, v4")
e("v_and_b32 v2, 1, v3")
e("v_lshl_add_u32 v4, v2, 5, v4")
e("v_lshl_add_u32 v4, v5, 3, v4")
e("s_lshl_b32 s30, s24, 13")
e(f"s_add_u32 s30, s30, {R0}")
e(f"v_add_u32 v{vB}, s30, v4")
e("v_and_b32 v2, 31, v1")
e("v_add_u32 v2, s27, v2")
e("s_movk_i32 s29, 400")
e("v_mul_lo_u32 v2, v2, s29")
e("s_mul_i32 s31, s24, 100")
e("v_add_u32 v2, s31, v2")
for t in range(4):
    e(f"v_add_u32 v{vIoff+t}, {t*32*400}, v2")
e("s_lshl_b32 s31, s26, 4")
e("s_add_u32 s31, s31, s27")
e("s_lshl_b32 s32, s24, 2")
e("s_add_u32 s31, s31, s32")
e("s_mul_i32 s32, s31, 400")
e("v_and_b32 v2, 15, v1")
e(f"v_lshl_add_u32 v{vPoff}, v2, 2, s32")
e("s_waitcnt lgkmcnt(0)")
e("s_mov_b32 s36, s8"); e("s_mov_b32 s37, s9"); e("s_mov_b32 s38, 20000"); e("s_mov_b32 s39, 0x00020000")
e("s_mul_i32 s33, s25, 200"); e("s_mul_i32 s34, s24, 50"); e("s_add_u32 s33, s33, s34")
e("v_min_u32 v2, 49, v1"); e("v_add_u32 v2, s33, v2"); e("v_lshlrev_b32 v2, 9, v2")
e("s_lshl_b32 s34, s26, 6"); e("v_add_u32 v2, s34, v2")
e("global_load_dword v250, v2, s[10:11]")
e("s_lshl_b32 s33, s24, 10")
e("s_add_u32 s40, s6, s33"); e("s_addc_u32 s41, s7, 0")
e("s_mov_b32 s34, s33")
for j in range(32):
    if j==31:
        e("s_cmp_lg_u32 s24, 0"); e("s_cbranch_scc1 L_tabdone")
    e("s_mov_b32 m0, s34")
    e("s_nop 0")
    e(f"global_load_lds_dwordx4 v{vTabOff}, s[40:41]")
    e("s_add_u32 s40, s40, 4096"); e("s_addc_u32 s41, s41, 0")
    e("s_add_u32 s34, s34, 4096")
lab("L_tabdone")
e(f"s_add_u32 s34, s33, {R0}")
for j in range(5):
    e("s_mov_b32 m0, s34")
    e("s_nop 0")
    e(f"buffer_load_dwordx4 v{vWpOff}, s[36:39], s33 offen lds")
    e("s_add_u32 s33, s33, 4096"); e("s_add_u32 s34, s34, 4096")
e("s_waitcnt vmcnt(0)")
e("s_barrier")
tiles=[(ti,tj) for ti in range(7) for tj in range(ti,7)]
wreg={}
e("v_and_b32 v2, 15, v1")
e("v_cmp_gt_u32 s[42:43], 4, v2")
e("v_cmp_gt_u32 s[44:45], 16, v1")
e("s_and_b64 s[44:45], s[44:45], s[42:43]")
e("s_mov_b32 s46, 0xffff0000")
for b0 in range(0,28,7):
    batch=tiles[b0:b0+7]
    for k,(ti,tj) in enumerate(batch):
        t=60+4*k
        e(f"ds_read_b64_tr_b16 v[{t}:{t+1}], v{vW1} offset:{ti*3200+tj*32}")
        if ti!=tj: e(f"ds_read_b64 v[{t+2}:{t+3}], v{vW2} offset:{tj*3200+ti*32}")
    e("s_waitcnt lgkmcnt(0)")
    for k,(ti,tj) in enumerate(batch):
        t=60+4*k; r=vWt+4*(b0+k); wreg[(ti,tj)]=r
        for d in range(2):
            e(f"v_lshlrev_b32 v{r+2*d}, 16, v{t+d}")
            e(f"v_and_b32 v{r+2*d+1}, s46, v{t+d}")
            if ti!=tj:
                e(f"v_lshlrev_b32 v{vT0}, 16, v{t+2+d}")
                e(f"v_and_b32 v{vT1}, s46, v{t+2+d}")
                e(f"v_add_f32 v{r+2*d}, v{r+2*d}, v{vT0}")
                e(f"v_add_f32 v{r+2*d+1}, v{r+2*d+1}, v{vT1}")
        if tj==6:
            m="s[44:45]" if ti==6 else "s[42:43]"
            for d in range(4): e(f"v_cndmask_b32 v{r+d}, 0, v{r+d}, {m}")
e("s_barrier")
def addr_base(dst,src,xr):
    e(f"v_bfe_u32 v{vT0}, v{src}, 1, 3")
    e(f"v_lshlrev_b32 v{vT1}, 7, v{src}")
    e(f"v_lshl_or_b32 v{vT0}, v{vT0}, 4, v{vT1}")
    e(f"v_xor_b32 v{dst}, v{vT0}, v{xr}")
e("v_and_b32 v2, 15, v1"); e("v_min_u32 v2, 3, v2"); e(f"v_lshl_add_u32 v{vT3}, v2, 2, s32")
for q in range(4):
    for t in range(7):
        e(f"global_load_dword v{60+7*q+t}, v{vPoff if t<6 else vT3}, s[4:5] offset:{q*400+t*64}")
e("s_mul_i32 s33, s24, 819200")
e("s_lshl_b32 s34, s26, 6")
e("s_add_u32 s33, s33, s34")
e("s_add_u32 s56, s10, s33"); e("s_addc_u32 s57, s11, 0")
e("s_mov_b32 s47, 0")
dmaTok={}
def dmaB(u):
    e(f"s_add_u32 m0, s30, {(u&7)*1024}")
    e("s_add_u32 s40, s56, s47"); e("s_addc_u32 s41, s57, 0")
    e(f"global_load_lds_dwordx4 v{vBoff}, s[40:41]")
    dmaTok[u]=VM.issue()
    e("s_add_u32 s47, s47, 8192"); e(f"s_min_u32 s47, s47, {99*8192}")
e("s_waitcnt vmcnt(0)")
for u in range(6): dmaB(u)
def pnn_valu(k,ti,tj):
    d=vD+(k&3)*4; w=wreg[(ti,tj)]
    e(f"v_cvt_pk_bf16_f32 v{vPk}, v{d}, v{d+1}")
    e(f"v_cvt_pk_bf16_f32 v{vPk+1}, v{d+2}, v{d+3}")
    e(f"v_lshlrev_b32 v{d}, 16, v{vPk}")
    e(f"v_and_b32 v{d+1}, s46, v{vPk}")
    e(f"v_lshlrev_b32 v{d+2}, 16, v{vPk+1}")
    e(f"v_and_b32 v{d+3}, s46, v{vPk+1}")
    for i in range(4): e(f"v_fmac_f32 v{vDacc+i}, v{d+i}, v{w+i}")
e("s_mov_b32 s48, 0")
e("s_lshl_b32 s50, s31, 2")
e("s_add_u32 s50, s50, 131072")
lab("L_pnn")
a_=aP
for t in range(7):
    addr_base(vEb,60+t,vS16)
    e(f"v_xor_b32 v{vEb+1}, 64, v{vEb}")
    e(f"ds_read_b128 a[{a_+8*t}:{a_+8*t+3}], v{vEb}")
    e(f"ds_read_b128 a[{a_+8*t+4}:{a_+8*t+7}], v{vEb+1}")
for i in range(21): e(f"v_mov_b32 v{60+i}, v{67+i}")
for i in range(4): e(f"v_mov_b32 v{vDacc+i}, 0")
e("s_waitcnt lgkmcnt(0)")
for k,(ti,tj) in enumerate(tiles):
    d=vD+(k&3)*4
    e(f"v_mfma_f32_16x16x32_bf16 v[{d}:{d+3}], a[{a_+8*ti}:{a_+8*ti+3}], a[{a_+8*tj}:{a_+8*tj+3}], 0")
    e(f"v_mfma_f32_16x16x32_bf16 v[{d}:{d+3}], a[{a_+8*ti+4}:{a_+8*ti+7}], a[{a_+8*tj+4}:{a_+8*tj+7}], v[{d}:{d+3}]")
    if k>=2:
        if k==2: e("s_nop 4")
        pnn_valu(k-2,*tiles[k-2])
e("s_nop 7"); e("s_nop 3")
pnn_valu(26,*tiles[26]); pnn_valu(27,*tiles[27])
e(f"v_add_f32 v{vDacc}, v{vDacc}, v{vDacc+1}")
e(f"v_add_f32 v{vDacc+2}, v{vDacc+2}, v{vDacc+3}")
e(f"v_add_f32 v{vT0}, v{vDacc}, v{vDacc+2}")
for sh in (1,2,4,8):
    e("s_nop 1")
    e(f"v_add_f32_dpp v{vT0}, v{vT0}, v{vT0} row_shr:{sh} row_mask:0xf bank_mask:0xf bound_ctrl:0")
e("s_nop 1")
for i,ln in enumerate((15,31,47,63)): e(f"v_readlane_b32 s{52+i}, v{vT0}, {ln}")
e("s_nop 3")
e(f"v_mov_b32 v{vT0}, s52")
for i in (53,54,55): e(f"v_add_f32 v{vT0}, s{i}, v{vT0}")
e(f"v_mov_b32 v{vT1}, s50")
e("s_mov_b64 exec, 1")
e(f"global_store_dword v{vT1}, v{vT0}, s[22:23] sc1")
e("s_mov_b64 exec, -1")
e("s_add_u32 s50, s50, 4")
e("s_add_u32 s48, s48, 1")
e("s_cmp_lt_u32 s48, 4")
e("s_cbranch_scc1 L_pnn")
vIA=vIdx; vIB=vIdx+16
idxTok=[0]
def idxload():
    for t in range(4):
        e(f"global_load_dwordx4 v[{vIB+4*t}:{vIB+4*t+3}], v{vIoff+t}, s[4:5]")
        idxTok[0]=VM.issue()
    e("s_add_u32 s49, s49, 1"); e("s_cmp_lt_u32 s49, 6"); e("s_cselect_b32 s51, 16, 4")
    e("s_cmp_lt_u32 s49, 7"); e("s_cselect_b32 s51, s51, 0")
    for t in range(4): e(f"v_add_u32 v{vIoff+t}, s51, v{vIoff+t}")
def idxswap():
    VM.wait(idxTok[0])
    for i in range(16): e(f"v_mov_b32 v{vIA+i}, v{vIB+i}")
    idxload()
lgTok={}
def mlp_reads(u,tail=False):
    f,s_=u>>2,u&3
    if s_==0:
        if (f&3)==0: idxswap()
        for t in range(4):
            addr_base(vEb+4*t,vIA+4*t+(3 if tail else (f&3)),vH16)
            for ss in (1,2,3): e(f"v_xor_b32 v{vEb+4*t+ss}, {32*ss}, v{vEb+4*t}")
    VM.wait(dmaTok[u])
    eb=vE+(u&1)*16; wb=vWf+(u&1)*4
    e(f"ds_read_b64_tr_b16 v[{wb}:{wb+1}], v{vB} offset:{(u&7)*1024}"); LG.issue()
    e(f"ds_read_b64_tr_b16 v[{wb+2}:{wb+3}], v{vB} offset:{(u&7)*1024+256}"); LG.issue()
    for t in range(4):
        e(f"ds_read_b128 v[{eb+4*t}:{eb+4*t+3}], v{vEb+4*t+s_}"); lgTok[u]=LG.issue()
def step(u,last=False,tail=False):
    if not last: mlp_reads(u+1,tail)
    LG.wait(lgTok[u])
    eb=vE+(u&1)*16; wb=vWf+(u&1)*4
    for t in range(4):
        e(f"v_mfma_f32_32x32x16_bf16 a[{16*t}:{16*t+15}], v[{wb}:{wb+3}], v[{eb+4*t}:{eb+4*t+3}], a[{16*t}:{16*t+15}]")
    if not last: dmaB(u+7)
for i in range(64): e(f"v_accvgpr_write_b32 a{i}, 0")
LG.n=0
e("s_mov_b32 s49, 0")
idxload()
mlp_reads(0)
dmaB(6)
bodies=[]
for g in range(3):
    st=len(L)
    for u in range(16*g,16*g+16): step(u, tail=False)
    bodies.append(L[st:]);
    if g>0: del L[st:]
assert bodies[1]==bodies[2]
for x,y in zip(bodies[0],bodies[1]):
    if x!=y: print(x,"|",y)
st=len(L)-len(bodies[0]); L[st:]=bodies[1]
L.insert(st,"L_mlp:"); L.insert(st,"    s_mov_b32 s58, 0")
e("s_add_u32 s58, s58, 1"); e("s_cmp_lt_u32 s58, 6"); e("s_cbranch_scc1 L_mlp")
e("s_waitcnt lgkmcnt(0)")
LG.n=0
for t in range(4):
    addr_base(vEb+4*t,vIA+4*t+3,vH16)
    for ss in (1,2,3): e(f"v_xor_b32 v{vEb+4*t+ss}, {32*ss}, v{vEb+4*t}")
for t in range(4):
    e(f"ds_read_b128 v[{vE+4*t}:{vE+4*t+3}], v{vEb+4*t}"); lgTok[48]=LG.issue()
for u in range(48,52): step(u,last=(u==51),tail=True)
e("s_lshl_b32 s33, s26, 6")
e(f"v_lshrrev_b32 v{vT0}, 1, v{vH16}")
e(f"v_add_u32 v{vT0}, s33, v{vT0}")
for q in range(4):
    e(f"global_load_dwordx2 v[{vIdx+2*q}:{vIdx+2*q+1}], v{vT0}, s[12:13] offset:{16*q}")
    e(f"global_load_dwordx2 v[{vIdx+8+2*q}:{vIdx+8+2*q+1}], v{vT0}, s[14:15] offset:{16*q}")
e("s_nop 7"); e("s_nop 7")
e("s_barrier")
e("s_lshl_b32 s33, s24, 14")
e(f"v_lshl_add_u32 v{vT0}, v1, 4, s33")
for t in range(4):
    for q in range(4):
        e(f"ds_write_b128 v{vT0}, a[{16*t+4*q}:{16*t+4*q+3}] offset:{t*4096+q*1024}")
e("s_waitcnt lgkmcnt(0)")
e("s_barrier")
e("s_lshl_b32 s33, s24, 12")
e(f"v_lshl_add_u32 v{vT0}, v1, 4, s33")
for wv in range(4):
    for q in range(4):
        e(f"ds_read_b128 v[{100+16*wv+4*q}:{100+16*wv+4*q+3}], v{vT0} offset:{wv*16384+q*1024}")
e("s_waitcnt lgkmcnt(0) vmcnt(0)")
e("s_mov_b32 s33, 0xffff0000")
e("s_mov_b32 s34, 0x3d372713")
e("s_mov_b32 s35, 0xc0135761")
e(f"v_mov_b32 v{vDacc}, 0")
for r_ in range(16):
    x=100+r_
    e(f"v_add_f32 v{x}, v{x}, v{116+r_}")
    e(f"v_add_f32 v{132+r_}, v{132+r_}, v{148+r_}")
    e(f"v_add_f32 v{x}, v{x}, v{132+r_}")
    breg=vIdx+(r_>>1); wr=vIdx+8+(r_>>1)
    e(f"v_cvt_pk_bf16_f32 v{x}, v{x}, v{x}")
    e(f"v_lshlrev_b32 v{x}, 16, v{x}")
    if r_&1: e(f"v_and_b32 v{vT1}, s33, v{breg}"); e(f"v_and_b32 v{vT2}, s33, v{wr}")
    else:    e(f"v_lshlrev_b32 v{vT1}, 16, v{breg}"); e(f"v_lshlrev_b32 v{vT2}, 16, v{wr}")
    e(f"v_add_f32 v{x}, v{x}, v{vT1}")
    e(f"v_cvt_pk_bf16_f32 v{x}, v{x}, v{x}")
    e(f"v_lshlrev_b32 v{x}, 16, v{x}")
    e(f"v_mul_f32 v{vT1}, v{x}, v{x}")
    e(f"v_fma_f32 v{vT1}, v{vT1}, s34, 1.0")
    e(f"v_mul_f32 v{vT1}, v{vT1}, v{x}")
    e(f"v_mul_f32 v{vT1}, s35, v{vT1}")
    e(f"v_exp_f32 v{vT1}, v{vT1}")
    e("s_nop 0")
    e(f"v_add_f32 v{vT1}, 1.0, v{vT1}")
    e(f"v_rcp_f32 v{vT1}, v{vT1}")
    e("s_nop 0")
    e(f"v_mul_f32 v{x}, v{x}, v{vT1}")
    e(f"v_cvt_pk_bf16_f32 v{x}, v{x}, v{x}")
    e(f"v_lshlrev_b32 v{x}, 16, v{x}")
    e(f"v_fmac_f32 v{vDacc}, v{x}, v{vT2}")
e(f"v_mov_b32 v{vDacc+1}, v{vDacc}")
e("s_nop 1")
e(f"v_permlane32_swap_b32 v{vDacc}, v{vDacc+1}")
e("s_nop 1")
e(f"v_add_f32 v{vDacc}, v{vDacc}, v{vDacc+1}")
e("s_lshl_b32 s33, s2, 9")
e("s_lshl_b32 s34, s24, 7")
e("s_add_u32 s33, s33, s34")
e(f"v_lshl_add_u32 v{vT0}, v1, 2, s33")
e("s_mov_b64 exec, 0xffffffff")
e(f"global_store_dword v{vT0}, v{vDacc}, s[22:23] sc1")
e("s_mov_b64 exec, -1")
e("s_waitcnt vmcnt(0)")
e("s_barrier")
e("s_cmp_lg_u32 s24, 0")
e("s_cbranch_scc1 L_end")
e("s_lshl_b32 s33, s25, 2")
e(f"v_mov_b32 v{vT0}, s33")
e(f"v_mov_b32 v{vT1}, 1")
e("s_mov_b64 exec, 1")
e(f"global_atomic_add v{vT2}, v{vT0}, v{vT1}, s[20:21] sc0 sc1")
e("s_waitcnt vmcnt(0)")
e(f"v_readfirstlane_b32 s33, v{vT2}")
e("s_mov_b64 exec, -1")
e("s_cmp_lg_u32 s33, 7")
e("s_cbranch_scc1 L_end")
e("s_lshl_b32 s33, s25, 12")
e(f"v_lshl_add_u32 v{vT0}, v1, 3, s33")
for j in range(8):
    e(f"global_load_dwordx2 v[{100+2*j}:{101+2*j}], v{vT0}, s[22:23] offset:{512*j} sc1")
e("s_lshl_b32 s33, s25, 9")
e("s_add_u32 s33, s33, 131072")
e(f"v_lshl_add_u32 v{vT1}, v1, 3, s33")
e(f"global_load_dwordx2 v[116:117], v{vT1}, s[22:23] sc1")
e(f"v_mov_b32 v{vT2}, 0")
e(f"global_load_ushort v118, v{vT2}, s[16:17]")
e("s_waitcnt vmcnt(0)")
e("v_lshlrev_b32 v118, 16, v118")
for d in range(2):
    for j in range(1,8): e(f"v_add_f32 v{100+d}, v{100+d}, v{100+2*j+d}")
    for rr in (100+d,116+d):
        e(f"v_cvt_pk_bf16_f32 v{rr}, v{rr}, v{rr}"); e(f"v_lshlrev_b32 v{rr}, 16, v{rr}")
    e(f"v_add_f32 v{100+d}, v{100+d}, v118")
    e(f"v_cvt_pk_bf16_f32 v{100+d}, v{100+d}, v{100+d}"); e(f"v_lshlrev_b32 v{100+d}, 16, v{100+d}")
    e(f"v_add_f32 v{100+d}, v{100+d}, v{116+d}")
e("v_cvt_pk_bf16_f32 v100, v100, v101")
e("s_lshl_b32 s33, s25, 8")
e(f"v_lshl_add_u32 v{vT0}, v1, 2, s33")
e(f"global_store_dword v{vT0}, v100, s[18:19]")
e("s_waitcnt vmcnt(0)")
lab("L_end")

src=open('standalone__deep_cross_pnn__recsys.s.ref').read().split('\n')
out=[]
for ln in src:
    if ln.startswith('; @launch'): out.append('; @launch grid=(256,1,1) block=(256,1,1) lds=163840'); continue
    out.append(ln)
    if ln.startswith('standalone__deep_cross_pnn__recsys_kernel:'): break
out+=L
out.append('s_endpgm')
i=src.index('s_endpgm')
for ln in src[i+1:]:
    ln=ln.replace('next_free_vgpr 256','next_free_vgpr 512')
    out.append(ln)
open('standalone__deep_cross_pnn__recsys.s','w').write('\n'.join(out))
```

```python
import sys
L=[]
def e(s): L.append("    "+s)
def lab(s): L.append(s+":")
class Trk:
    def __init__(s,name): s.n=0; s.name=name
    def issue(s): s.n+=1; return s.n
    def wait(s,tok):
        k=s.n-tok
        e(f"s_waitcnt {s.name}({k})")
VM=Trk("vmcnt"); LG=Trk("lgkmcnt")
R0=128000
vL=1; vT0=2; vT1=3; vT2=4; vT3=5
vTabOff=6; vWpOff=7; vW1=8; vW2=9; vBoff=10; vB=11; vH16=12; vS16=13
vIoff=14
vPoff=18
vDacc=20
vD=24
vPk=40
vEb=42
vE=60
vWf=92
vWt=72
vIdx=100
vPidx=60
vB1=60; vW2e=68
aAcc=0; aP=0

e("s_cmp_ge_u32 s2, 256")
e("s_cbranch_scc1 L_end")
e("s_load_dwordx16 s[4:19], s[0:1], 0")
e("s_load_dwordx4 s[20:23], s[0:1], 64")
e("v_and_b32 v1, 63, v0")
e("v_lshrrev_b32 v2, 6, v0")
e("s_nop 0")
e("v_readfirstlane_b32 s24, v2")
e("s_lshr_b32 s59, s24, 2")
e("s_and_b32 s24, s24, 3")
e("s_lshr_b32 s25, s2, 3")
e("s_and_b32 s26, s2, 7")
e("s_lshl_b32 s27, s25, 7")
e("v_and_b32 v2, 7, v1")
e("v_lshrrev_b32 v3, 4, v1")
e("s_and_b32 s28, s24, 1")
e("s_lshl_b32 s28, s28, 2")
e("v_add_u32 v4, s28, v3")
e("v_and_b32 v4, 7, v4")
e("v_xor_b32 v2, v2, v4")
e("v_lshlrev_b32 v2, 4, v2")
e("v_lshrrev_b32 v4, 3, v1")
e(f"v_lshl_or_b32 v{vTabOff}, v4, 7, v2")
e(f"v_lshlrev_b32 v{vWpOff}, 4, v1")
e("v_and_b32 v2, 15, v1")
e("v_lshrrev_b32 v4, 2, v2")
e("v_lshl_add_u32 v4, v3, 2, v4")
e("s_movk_i32 s29, 200")
e("v_mul_lo_u32 v4, v4, s29")
e("v_and_b32 v5, 3, v1")
e("v_lshl_add_u32 v4, v5, 3, v4")
e(f"v_add_u32 v{vW1}, {R0}, v4")
e("v_mul_lo_u32 v4, v2, s29")
e("v_lshl_add_u32 v4, v3, 3, v4")
e(f"v_add_u32 v{vW2}, {R0}, v4")
e("v_lshrrev_b32 v4, 2, v1")
e("v_lshlrev_b32 v4, 9, v4")
e(f"v_lshl_add_u32 v{vBoff}, v5, 4, v4")
e("v_lshrrev_b32 v4, 5, v1")
e(f"v_lshlrev_b32 v{vH16}, 4, v4")
e(f"v_lshlrev_b32 v{vS16}, 4, v3")
e("v_lshrrev_b32 v4, 2, v2")
e(f"v_lshrrev_b32 v2, 1, v{vH16}")
e("v_add_u32 v4, v4, v2")
e("v_lshlrev_b32 v4, 6, v4")
e("v_and_b32 v2, 1, v3")
e("v_lshl_add_u32 v4, v2, 5, v4")
e("v_lshl_add_u32 v4, v5, 3, v4")
e("s_lshl_b32 s30, s24, 13")
e(f"s_add_u32 s30, s30, {R0}")
e(f"v_add_u32 v{vB}, s30, v4")
e("v_and_b32 v2, 31, v1")
e("v_add_u32 v2, s27, v2")
e("s_movk_i32 s29, 400")
e("v_mul_lo_u32 v2, v2, s29")
e("s_mul_i32 s31, s24, 100")
e("v_add_u32 v2, s31, v2")
for t in range(4):
    e(f"v_add_u32 v{vIoff+t}, {t*32*400}, v2")
e("s_lshl_b32 s31, s26, 4")
e("s_add_u32 s31, s31, s27")
e("s_lshl_b32 s32, s24, 2")
e("s_add_u32 s31, s31, s32")
e("s_mul_i32 s32, s31, 400")
e("v_and_b32 v2, 15, v1")
e(f"v_lshl_add_u32 v{vPoff}, v2, 2, s32")
e("s_waitcnt lgkmcnt(0)")
e("s_mov_b32 s36, s8"); e("s_mov_b32 s37, s9"); e("s_mov_b32 s38, 20000"); e("s_mov_b32 s39, 0x00020000")
e("s_cmp_eq_u32 s59, 1"); e("s_cbranch_scc1 L_fillskip")
e("s_mul_i32 s33, s25, 200"); e("s_mul_i32 s34, s24, 50"); e("s_add_u32 s33, s33, s34")
e("v_min_u32 v2, 49, v1"); e("v_add_u32 v2, s33, v2"); e("v_lshlrev_b32 v2, 9, v2")
e("s_lshl_b32 s34, s26, 6"); e("v_add_u32 v2, s34, v2")
e("global_load_dword v190, v2, s[10:11]")
e("s_lshl_b32 s33, s24, 10")
e("s_add_u32 s40, s6, s33"); e("s_addc_u32 s41, s7, 0")
e("s_mov_b32 s34, s33")
for j in range(32):
    if j==31:
        e("s_cmp_lg_u32 s24, 0"); e("s_cbranch_scc1 L_tabdone")
    e("s_mov_b32 m0, s34")
    e("s_nop 0")
    e(f"global_load_lds_dwordx4 v{vTabOff}, s[40:41]")
    e("s_add_u32 s40, s40, 4096"); e("s_addc_u32 s41, s41, 0")
    e("s_add_u32 s34, s34, 4096")
lab("L_tabdone")
e(f"s_add_u32 s34, s33, {R0}")
for j in range(5):
    e("s_mov_b32 m0, s34")
    e("s_nop 0")
    e(f"buffer_load_dwordx4 v{vWpOff}, s[36:39], s33 offen lds")
    e("s_add_u32 s33, s33, 4096"); e("s_add_u32 s34, s34, 4096")
lab("L_fillskip")
e("s_waitcnt vmcnt(0)")
e("s_barrier")
e("s_cmp_eq_u32 s59, 0"); e("s_cbranch_scc1 L_mlprole")
tiles=[(ti,tj) for ti in range(7) for tj in range(ti,7)]
wreg={}
e("v_and_b32 v2, 15, v1")
e("v_cmp_gt_u32 s[42:43], 4, v2")
e("v_cmp_gt_u32 s[44:45], 16, v1")
e("s_and_b64 s[44:45], s[44:45], s[42:43]")
e("s_mov_b32 s46, 0xffff0000")
for b0 in range(0,28,7):
    batch=tiles[b0:b0+7]
    for k,(ti,tj) in enumerate(batch):
        t=44+4*k
        e(f"ds_read_b64_tr_b16 v[{t}:{t+1}], v{vW1} offset:{ti*3200+tj*32}")
        if ti!=tj: e(f"ds_read_b64 v[{t+2}:{t+3}], v{vW2} offset:{tj*3200+ti*32}")
    e("s_waitcnt lgkmcnt(0)")
    for k,(ti,tj) in enumerate(batch):
        t=44+4*k; r=vWt+4*(b0+k); wreg[(ti,tj)]=r
        for d in range(2):
            e(f"v_lshlrev_b32 v{r+2*d}, 16, v{t+d}")
            e(f"v_and_b32 v{r+2*d+1}, s46, v{t+d}")
            if ti!=tj:
                e(f"v_lshlrev_b32 v{vT0}, 16, v{t+2+d}")
                e(f"v_and_b32 v{vT1}, s46, v{t+2+d}")
                e(f"v_add_f32 v{r+2*d}, v{r+2*d}, v{vT0}")
                e(f"v_add_f32 v{r+2*d+1}, v{r+2*d+1}, v{vT1}")
        if tj==6:
            m="s[44:45]" if ti==6 else "s[42:43]"
            for d in range(4): e(f"v_cndmask_b32 v{r+d}, 0, v{r+d}, {m}")
e("s_barrier")
def addr_base(dst,src,xr):
    e(f"v_bfe_u32 v{vT0}, v{src}, 1, 3")
    e(f"v_lshlrev_b32 v{vT1}, 7, v{src}")
    e(f"v_lshl_or_b32 v{vT0}, v{vT0}, 4, v{vT1}")
    e(f"v_xor_b32 v{dst}, v{vT0}, v{xr}")
e("v_and_b32 v2, 15, v1"); e("v_min_u32 v2, 3, v2"); e(f"v_lshl_add_u32 v{vT3}, v2, 2, s32")
for q in range(4):
    for t in range(7):
        e(f"global_load_dword v{44+7*q+t}, v{vPoff if t<6 else vT3}, s[4:5] offset:{q*400+t*64}")
e("s_waitcnt vmcnt(0)")
def pnn_valu(k,ti,tj):
    d=vD+(k&3)*4; w=wreg[(ti,tj)]
    e(f"v_cvt_pk_bf16_f32 v{vPk}, v{d}, v{d+1}")
    e(f"v_cvt_pk_bf16_f32 v{vPk+1}, v{d+2}, v{d+3}")
    e(f"v_lshlrev_b32 v{d}, 16, v{vPk}")
    e(f"v_and_b32 v{d+1}, s46, v{vPk}")
    e(f"v_lshlrev_b32 v{d+2}, 16, v{vPk+1}")
    e(f"v_and_b32 v{d+3}, s46, v{vPk+1}")
    for i in range(4): e(f"v_fmac_f32 v{vDacc+i}, v{d+i}, v{w+i}")
e("s_mov_b32 s48, 0")
e("s_lshl_b32 s50, s31, 2")
e("s_add_u32 s50, s50, 131072")
lab("L_pnn")
a_=aP
for t in range(7):
    addr_base(vEb,44+t,vS16)
    e(f"v_xor_b32 v{vEb+1}, 64, v{vEb}")
    e(f"ds_read_b128 a[{a_+8*t}:{a_+8*t+3}], v{vEb}")
    e(f"ds_read_b128 a[{a_+8*t+4}:{a_+8*t+7}], v{vEb+1}")
for i in range(21): e(f"v_mov_b32 v{44+i}, v{51+i}")
for i in range(4): e(f"v_mov_b32 v{vDacc+i}, 0")
e("s_waitcnt lgkmcnt(0)")
for k,(ti,tj) in enumerate(tiles):
    d=vD+(k&3)*4
    e(f"v_mfma_f32_16x16x32_bf16 v[{d}:{d+3}], a[{a_+8*ti}:{a_+8*ti+3}], a[{a_+8*tj}:{a_+8*tj+3}], 0")
    e(f"v_mfma_f32_16x16x32_bf16 v[{d}:{d+3}], a[{a_+8*ti+4}:{a_+8*ti+7}], a[{a_+8*tj+4}:{a_+8*tj+7}], v[{d}:{d+3}]")
    if k>=2:
        if k==2: e("s_nop 4")
        pnn_valu(k-2,*tiles[k-2])
e("s_nop 7"); e("s_nop 3")
pnn_valu(26,*tiles[26]); pnn_valu(27,*tiles[27])
e(f"v_add_f32 v{vDacc}, v{vDacc}, v{vDacc+1}")
e(f"v_add_f32 v{vDacc+2}, v{vDacc+2}, v{vDacc+3}")
e(f"v_add_f32 v{vT0}, v{vDacc}, v{vDacc+2}")
for sh in (1,2,4,8):
    e("s_nop 1")
    e(f"v_add_f32_dpp v{vT0}, v{vT0}, v{vT0} row_shr:{sh} row_mask:0xf bank_mask:0xf bound_ctrl:0")
e("s_nop 1")
for i,ln in enumerate((15,31,47,63)): e(f"v_readlane_b32 s{52+i}, v{vT0}, {ln}")
e("s_nop 3")
e(f"v_mov_b32 v{vT0}, s52")
for i in (53,54,55): e(f"v_add_f32 v{vT0}, s{i}, v{vT0}")
e(f"v_mov_b32 v{vT1}, s50")
e("s_mov_b64 exec, 1")
e(f"global_store_dword v{vT1}, v{vT0}, s[22:23] sc1")
e("s_mov_b64 exec, -1")
e("s_add_u32 s50, s50, 4")
e("s_add_u32 s48, s48, 1")
e("s_cmp_lt_u32 s48, 4")
e("s_cbranch_scc1 L_pnn")
e("s_barrier"); e("s_barrier"); e("s_waitcnt vmcnt(0)"); e("s_barrier"); e("s_branch L_end")
lab("L_mlprole")
e("s_barrier")
e("s_mul_i32 s33, s24, 819200")
e("s_lshl_b32 s34, s26, 6")
e("s_add_u32 s33, s33, s34")
e("s_add_u32 s56, s10, s33"); e("s_addc_u32 s57, s11, 0")
e("s_mov_b32 s47, 0")
dmaTok={}
def dmaB(u):
    e(f"s_add_u32 m0, s30, {(u&7)*1024}")
    e("s_add_u32 s40, s56, s47"); e("s_addc_u32 s41, s57, 0")
    e(f"global_load_lds_dwordx4 v{vBoff}, s[40:41]")
    dmaTok[u]=VM.issue()
    e("s_add_u32 s47, s47, 8192"); e(f"s_min_u32 s47, s47, {99*8192}")
for u in range(6): dmaB(u)

vIA=vIdx; vIB=vIdx+16
idxTok=[0]
def idxload():
    for t in range(4):
        e(f"global_load_dwordx4 v[{vIB+4*t}:{vIB+4*t+3}], v{vIoff+t}, s[4:5]")
        idxTok[0]=VM.issue()
    e("s_add_u32 s49, s49, 1"); e("s_cmp_lt_u32 s49, 6"); e("s_cselect_b32 s51, 16, 4")
    e("s_cmp_lt_u32 s49, 7"); e("s_cselect_b32 s51, s51, 0")
    for t in range(4): e(f"v_add_u32 v{vIoff+t}, s51, v{vIoff+t}")
def idxswap():
    VM.wait(idxTok[0])
    for i in range(16): e(f"v_mov_b32 v{vIA+i}, v{vIB+i}")
    idxload()
lgTok={}
def mlp_reads(u,tail=False):
    f,s_=u>>2,u&3
    if s_==0:
        if (f&3)==0: idxswap()
        for t in range(4):
            addr_base(vEb+4*t,vIA+4*t+(3 if tail else (f&3)),vH16)
            for ss in (1,2,3): e(f"v_xor_b32 v{vEb+4*t+ss}, {32*ss}, v{vEb+4*t}")
    VM.wait(dmaTok[u])
    eb=vE+(u&1)*16; wb=vWf+(u&1)*4
    e(f"ds_read_b64_tr_b16 v[{wb}:{wb+1}], v{vB} offset:{(u&7)*1024}"); LG.issue()
    e(f"ds_read_b64_tr_b16 v[{wb+2}:{wb+3}], v{vB} offset:{(u&7)*1024+256}"); LG.issue()
    for t in range(4):
        e(f"ds_read_b128 v[{eb+4*t}:{eb+4*t+3}], v{vEb+4*t+s_}"); lgTok[u]=LG.issue()
def step(u,last=False,tail=False):
    if not last: mlp_reads(u+1,tail)
    LG.wait(lgTok[u])
    eb=vE+(u&1)*16; wb=vWf+(u&1)*4
    for t in range(4):
        e(f"v_mfma_f32_32x32x16_bf16 a[{16*t}:{16*t+15}], v[{wb}:{wb+3}], v[{eb+4*t}:{eb+4*t+3}], a[{16*t}:{16*t+15}]")
    if not last: dmaB(u+7)
for i in range(64): e(f"v_accvgpr_write_b32 a{i}, 0")
LG.n=0
e("s_mov_b32 s49, 0")
idxload()
mlp_reads(0)
dmaB(6)
bodies=[]
for g in range(3):
    st=len(L)
    for u in range(16*g,16*g+16): step(u, tail=False)
    bodies.append(L[st:]);
    if g>0: del L[st:]
assert bodies[1]==bodies[2]
for x,y in zip(bodies[0],bodies[1]):
    if x!=y: print(x,"|",y)
st=len(L)-len(bodies[0]); L[st:]=bodies[1]
L.insert(st,"L_mlp:"); L.insert(st,"    s_mov_b32 s58, 0")
e("s_add_u32 s58, s58, 1"); e("s_cmp_lt_u32 s58, 6"); e("s_cbranch_scc1 L_mlp")
e("s_waitcnt lgkmcnt(0)")
LG.n=0
for t in range(4):
    addr_base(vEb+4*t,vIA+4*t+3,vH16)
    for ss in (1,2,3): e(f"v_xor_b32 v{vEb+4*t+ss}, {32*ss}, v{vEb+4*t}")
for t in range(4):
    e(f"ds_read_b128 v[{vE+4*t}:{vE+4*t+3}], v{vEb+4*t}"); lgTok[48]=LG.issue()
for u in range(48,52): step(u,last=(u==51),tail=True)
e("s_lshl_b32 s33, s26, 6")
e(f"v_lshrrev_b32 v{vT0}, 1, v{vH16}")
e(f"v_add_u32 v{vT0}, s33, v{vT0}")
for q in range(4):
    e(f"global_load_dwordx2 v[{164+2*q}:{164+2*q+1}], v{vT0}, s[12:13] offset:{16*q}")
    e(f"global_load_dwordx2 v[{172+2*q}:{172+2*q+1}], v{vT0}, s[14:15] offset:{16*q}")
e("s_nop 7"); e("s_nop 7")
e("s_barrier")
e("s_lshl_b32 s33, s24, 14")
e(f"v_lshl_add_u32 v{vT0}, v1, 4, s33")
for t in range(4):
    for q in range(4):
        e(f"ds_write_b128 v{vT0}, a[{16*t+4*q}:{16*t+4*q+3}] offset:{t*4096+q*1024}")
e("s_waitcnt lgkmcnt(0)")
e("s_barrier")
e("s_lshl_b32 s33, s24, 12")
e(f"v_lshl_add_u32 v{vT0}, v1, 4, s33")
for wv in range(4):
    for q in range(4):
        e(f"ds_read_b128 v[{100+16*wv+4*q}:{100+16*wv+4*q+3}], v{vT0} offset:{wv*16384+q*1024}")
e("s_waitcnt lgkmcnt(0) vmcnt(0)")
e("s_mov_b32 s33, 0xffff0000")
e("s_mov_b32 s34, 0x3d372713")
e("s_mov_b32 s35, 0xc0135761")
e(f"v_mov_b32 v{vDacc}, 0")
for r_ in range(16):
    x=100+r_
    e(f"v_add_f32 v{x}, v{x}, v{116+r_}")
    e(f"v_add_f32 v{132+r_}, v{132+r_}, v{148+r_}")
    e(f"v_add_f32 v{x}, v{x}, v{132+r_}")
    breg=164+(r_>>1); wr=172+(r_>>1)
    e(f"v_cvt_pk_bf16_f32 v{x}, v{x}, v{x}")
    e(f"v_lshlrev_b32 v{x}, 16, v{x}")
    if r_&1: e(f"v_and_b32 v{vT1}, s33, v{breg}"); e(f"v_and_b32 v{vT2}, s33, v{wr}")
    else:    e(f"v_lshlrev_b32 v{vT1}, 16, v{breg}"); e(f"v_lshlrev_b32 v{vT2}, 16, v{wr}")
    e(f"v_add_f32 v{x}, v{x}, v{vT1}")
    e(f"v_cvt_pk_bf16_f32 v{x}, v{x}, v{x}")
    e(f"v_lshlrev_b32 v{x}, 16, v{x}")
    e(f"v_mul_f32 v{vT1}, v{x}, v{x}")
    e(f"v_fma_f32 v{vT1}, v{vT1}, s34, 1.0")
    e(f"v_mul_f32 v{vT1}, v{vT1}, v{x}")
    e(f"v_mul_f32 v{vT1}, s35, v{vT1}")
    e(f"v_exp_f32 v{vT1}, v{vT1}")
    e("s_nop 0")
    e(f"v_add_f32 v{vT1}, 1.0, v{vT1}")
    e(f"v_rcp_f32 v{vT1}, v{vT1}")
    e("s_nop 0")
    e(f"v_mul_f32 v{x}, v{x}, v{vT1}")
    e(f"v_cvt_pk_bf16_f32 v{x}, v{x}, v{x}")
    e(f"v_lshlrev_b32 v{x}, 16, v{x}")
    e(f"v_fmac_f32 v{vDacc}, v{x}, v{vT2}")
e(f"v_mov_b32 v{vDacc+1}, v{vDacc}")
e("s_nop 1")
e(f"v_permlane32_swap_b32 v{vDacc}, v{vDacc+1}")
e("s_nop 1")
e(f"v_add_f32 v{vDacc}, v{vDacc}, v{vDacc+1}")
e("s_lshl_b32 s33, s2, 9")
e("s_lshl_b32 s34, s24, 7")
e("s_add_u32 s33, s33, s34")
e(f"v_lshl_add_u32 v{vT0}, v1, 2, s33")
e("s_mov_b64 exec, 0xffffffff")
e(f"global_store_dword v{vT0}, v{vDacc}, s[22:23] sc1")
e("s_mov_b64 exec, -1")
e("s_waitcnt vmcnt(0)")
e("s_barrier")
e("s_cmp_lg_u32 s24, 0")
e("s_cbranch_scc1 L_end")
e("s_lshl_b32 s33, s25, 2")
e(f"v_mov_b32 v{vT0}, s33")
e(f"v_mov_b32 v{vT1}, 1")
e("s_mov_b64 exec, 1")
e(f"global_atomic_add v{vT2}, v{vT0}, v{vT1}, s[20:21] sc0 sc1")
e("s_waitcnt vmcnt(0)")
e(f"v_readfirstlane_b32 s33, v{vT2}")
e("s_mov_b64 exec, -1")
e("s_cmp_lg_u32 s33, 7")
e("s_cbranch_scc1 L_end")
e("s_lshl_b32 s33, s25, 12")
e(f"v_lshl_add_u32 v{vT0}, v1, 3, s33")
for j in range(8):
    e(f"global_load_dwordx2 v[{100+2*j}:{101+2*j}], v{vT0}, s[22:23] offset:{512*j} sc1")
e("s_lshl_b32 s33, s25, 9")
e("s_add_u32 s33, s33, 131072")
e(f"v_lshl_add_u32 v{vT1}, v1, 3, s33")
e(f"global_load_dwordx2 v[116:117], v{vT1}, s[22:23] sc1")
e(f"v_mov_b32 v{vT2}, 0")
e(f"global_load_ushort v118, v{vT2}, s[16:17]")
e("s_waitcnt vmcnt(0)")
e("v_lshlrev_b32 v118, 16, v118")
for d in range(2):
    for j in range(1,8): e(f"v_add_f32 v{100+d}, v{100+d}, v{100+2*j+d}")
    for rr in (100+d,116+d):
        e(f"v_cvt_pk_bf16_f32 v{rr}, v{rr}, v{rr}"); e(f"v_lshlrev_b32 v{rr}, 16, v{rr}")
    e(f"v_add_f32 v{100+d}, v{100+d}, v118")
    e(f"v_cvt_pk_bf16_f32 v{100+d}, v{100+d}, v{100+d}"); e(f"v_lshlrev_b32 v{100+d}, 16, v{100+d}")
    e(f"v_add_f32 v{100+d}, v{100+d}, v{116+d}")
e("v_cvt_pk_bf16_f32 v100, v100, v101")
e("s_lshl_b32 s33, s25, 8")
e(f"v_lshl_add_u32 v{vT0}, v1, 2, s33")
e(f"global_store_dword v{vT0}, v100, s[18:19]")
e("s_waitcnt vmcnt(0)")
lab("L_end")

src=open('standalone__deep_cross_pnn__recsys.s.ref').read().split('\n')
out=[]
for ln in src:
    if ln.startswith('; @launch'): out.append('; @launch grid=(256,1,1) block=(512,1,1) lds=163840'); continue
    out.append(ln)
    if ln.startswith('standalone__deep_cross_pnn__recsys_kernel:'): break
out+=L
out.append('s_endpgm')
i=src.index('s_endpgm')
for ln in src[i+1:]:
    ln=ln.replace('accum_offset 256','accum_offset 192')
    out.append(ln)
open('standalone__deep_cross_pnn__recsys.s','w').write('\n'.join(out))
```
